```python
import torch

def _softmax(x, axis=-1):
    return torch.softmax(x, dim=axis)

def _gelu(x):
    return torch.nn.functional.gelu(x, approximate='tanh')

def _silu(x):
    return torch.nn.functional.silu(x)

def _sigmoid(x):
    return torch.sigmoid(x)

def _layernorm(x, axis=-1, eps=1e-05):
    m = x.mean(dim=axis, keepdim=True)
    v = x.var(dim=axis, keepdim=True, unbiased=False)
    return (x - m) / torch.sqrt(v + eps)

def _scatter_add(tgt, idx, src, axis=0):
    return tgt.clone().index_add_(axis, idx, src)

def _segment_sum(src, seg, n):
    out = torch.zeros((n,) + src.shape[1:], dtype=src.dtype)
    return out.index_add_(0, seg, src)

def _pad(x, pw):
    flat = tuple((v for pair in reversed(pw) for v in pair))
    return torch.nn.functional.pad(x, flat)
kernel_name = 'adaLN_cond__mha_block_cached__moe_arch_mod__prompt'

def setup_inputs():

    _w = lambda a: (lambda t: t.to(torch.bfloat16) if t.is_floating_point() else t)(torch.as_tensor(a))

    def _A_setup():
        B, Sq, D = (1, 2048, 512)
        H, Sk, Dh = (32, 2048, 128)
        return {'x': _w((lambda *s: torch.randn(*s, dtype=torch.bfloat16) * 0.1)(B, Sq, D)), 'k_cache': _w((lambda *s: torch.randn(*s, dtype=torch.bfloat16) * 0.8)(B, H, Sk, Dh)), 'v_cache': _w((lambda *s: torch.randn(*s, dtype=torch.bfloat16) * 3.2)(B, H, Sk, Dh)), 'wq': _w((lambda *s: torch.randn(*s, dtype=torch.bfloat16) * 0.8)(D, H * Dh) * D ** (-0.5)), 'wo': _w((lambda *s: torch.randn(*s, dtype=torch.bfloat16) * 3.2)(H * Dh, D) * (H * Dh) ** (-0.5))}
    _A_in = _A_setup()

    def _B_setup():
        B, S, D, F, C = (1, 2048, 512, 1792, 1)
        return {'x': _w((lambda *s: torch.randn(*s, dtype=torch.bfloat16) * 0.1)(B, S, D)), 'w_r': _w((lambda *s: torch.randn(*s, dtype=torch.bfloat16) * 3.2)(D)), 'w_gate': _w((lambda *s: torch.randn(*s, dtype=torch.bfloat16) * 3.2)(D, F)), 'w_up': _w((lambda *s: torch.randn(*s, dtype=torch.bfloat16) * 3.2)(D, F)), 'w_down': _w((lambda *s: torch.randn(*s, dtype=torch.bfloat16) * 3.2)(F, D))}
    _B_in = _B_setup()
    return {'A_x': _A_in['x'], 'A_k_cache': _A_in['k_cache'], 'A_v_cache': _A_in['v_cache'], 'A_wq': _A_in['wq'], 'A_wo': _A_in['wo'], 'B_x': _B_in['x'], 'B_w_r': _B_in['w_r'], 'B_w_gate': _B_in['w_gate'], 'B_w_up': _B_in['w_up'], 'B_w_down': _B_in['w_down'], 'c': _w((lambda *s: torch.randn(*s, dtype=torch.bfloat16) * 0.2)(1, 512) * 8.0), 'w_mod': _w((lambda *s: torch.randn(*s, dtype=torch.bfloat16) * 0.2)(512, 6 * 512) * 512 ** (-0.5) * 8.0)}

def reference(A_x, A_k_cache, A_v_cache, A_wq, A_wo, B_x, B_w_r, B_w_gate, B_w_up, B_w_down, c, w_mod):

    def _A_ref(x, k_cache, v_cache, wq, wo):
        B, Sq, D = x.shape
        H, Dh = (32, 128)
        q = (lambda x, *d: x.permute(*d))((x @ wq).reshape(B, Sq, H, Dh), 0, 2, 1, 3)
        scores = torch.einsum('bhqd,bhkd->bhqk', q, k_cache) * Dh ** (-0.5)
        p = _softmax(scores, axis=-1)
        o = torch.einsum('bhqk,bhkd->bhqd', p, v_cache)
        return (lambda x, *d: x.permute(*d))(o, 0, 2, 1, 3).reshape(B, Sq, H * Dh) @ wo

    def _B_ref(x, w_r, w_gate, w_up, w_down):
        B, S, D = x.shape
        C = 1
        r = x @ w_r
        idx = torch.argsort(-r, axis=-1)[:, :C]
        idx_e = (lambda x, n, axis: torch.repeat_interleave(x, n, dim=axis))(idx.reshape(B, C, 1), D, axis=2)
        x_sel = (lambda x, i, axis: torch.take_along_dim(x, i, dim=axis))(x, idx_e, axis=1)
        g = _silu(x_sel @ w_gate)
        u = x_sel @ w_up
        y = g * u @ w_down
        r_sel = _sigmoid((lambda x, i, axis: torch.take_along_dim(x, i, dim=axis))(r, idx, axis=1))
        y = y * r_sel.reshape(B, C, 1)
        b_off = (torch.arange(B) * S).reshape(B, 1)
        flat_idx = (idx + b_off).reshape(B * C)
        zero = (x * 0.0).reshape(B * S, D)
        upd = _scatter_add(zero, flat_idx, y.reshape(B * C, D), axis=0)
        return x + upd.reshape(B, S, D)
    x = A_x
    mod = (_silu(c) @ w_mod).reshape(c.shape[0], 6, 1, -1)
    sa, ca, ga, sb, cb, gb = (mod[:, 0].clone(), mod[:, 1].clone(), mod[:, 2].clone(), mod[:, 3].clone(), mod[:, 4].clone(), mod[:, 5].clone())
    h = _layernorm(x, axis=-1) * (1 + ca) + sa
    x = x + ga * _A_ref(h, A_k_cache, A_v_cache, A_wq, A_wo)
    h = _layernorm(x, axis=-1) * (1 + cb) + sb
    x = x + gb * _B_ref(h, B_w_r, B_w_gate, B_w_up, B_w_down)
    return x
```

```python
import sys
def gen(name, nw, shape, opts, iters=32):
    L = []
    e = L.append
    nv = 512 if nw == 4 else 256
    acc = 256 if nw == 4 else 128
    big = shape == 32
    ng = (2 if nw == 4 else 1) if big else (4 if nw == 4 else 2)
    DR = 16 if big else 4
    e(f"; @launch grid=(256,1,1) block=({nw*64},1,1) lds=131072")
    e('.amdgcn_target "amdgcn-amd-amdhsa--gfx950"')
    e(".text"); e(f".globl {name}"); e(".p2align 8"); e(f".type {name},@function"); e(f"{name}:")
    e("s_cmp_ge_u32 s2, 256"); e("s_cbranch_scc1 L_end")
    e("s_load_dwordx4 s[4:7], s[0:1], 0"); e("s_waitcnt lgkmcnt(0)")
    e("s_mov_b32 s8, s4"); e("s_mov_b32 s9, s5"); e(f"s_mov_b32 s10, {0 if 'zero' in opts else 0x4000000}"); e("s_mov_b32 s11, 0x20000")
    e("s_mov_b32 s12, s6"); e("s_mov_b32 s13, s7"); e("s_mov_b32 s14, 0x400000"); e("s_mov_b32 s15, 0x20000")
    e("v_lshlrev_b32 v1, 4, v0")
    e("v_lshrrev_b32 v2, 6, v0"); e("s_nop 0"); e("v_readfirstlane_b32 s20, v2")
    e("s_lshl_b32 s21, s20, 10")
    e("v_and_b32 v3, 63, v0"); e("v_lshlrev_b32 v3, 4, v3")
    e("s_lshl_b32 s22, s2, 17")
    per = 128 // nw
    for i in range(per):
        e(f"s_add_u32 m0, s21, {i*nw*1024}")
        e(f"s_add_u32 s23, s22, {i*nw*1024}")
        e(f"buffer_load_dwordx4 v1, s[8:11], s23 offen lds")
    e("s_waitcnt vmcnt(0)"); e("s_barrier")
    for r in range(8, acc, 4):
        e(f"ds_read_b128 v[{r}:{r+3}], v3 offset:{(r*256) % 65536}")
        if r % 32 == 28: e("s_waitcnt lgkmcnt(0)")
    for r in range(0, nv - acc, 4):
        e(f"ds_read_b128 a[{r}:{r+3}], v3 offset:{(r*256+512) % 65536}")
        if r % 32 == 28: e("s_waitcnt lgkmcnt(0)")
    e("s_waitcnt lgkmcnt(0)")
    nS = 32 if nw == 4 else 16
    nP = nS // 2
    Sb = [16, 16 + nS]
    Pb = [16 + 2*nS, 16 + 2*nS + nP]
    NEGb = 16 + 2*nS + 2*nP
    nNEG = ng*DR
    tmp = NEGb + nNEG
    lt = tmp + 8
    ones = lt + 4
    ones = (ones + 3)//4*4
    lsum = ones + 4
    assert lsum + 16 <= acc
    nO = 128 if nw == 4 else 64
    nQ = nO // 2
    fb = nO + nQ
    NF = 8
    assert fb + NF*4 <= nv - acc
    for r in range(nQ):
        e(f"v_accvgpr_read_b32 v{tmp}, a{nO+r}")
        e(f"v_lshlrev_b32 v{tmp+1}, 16, v{tmp}")
        e(f"v_and_b32 v{tmp+2}, 0xffff0000, v{tmp}")
        e(f"v_mul_f32 v{tmp+1}, 0x3e19999a, v{tmp+1}")
        e(f"v_mul_f32 v{tmp+2}, 0x3e19999a, v{tmp+2}")
        e(f"v_cvt_pk_bf16_f32 v{tmp}, v{tmp+1}, v{tmp+2}")
        e(f"v_accvgpr_write_b32 a{nO+r}, v{tmp}")
    for r in range(nO): e(f"v_accvgpr_write_b32 a{r}, 0")
    for r in range(nNEG): e(f"v_mov_b32 v{NEGb+r}, -4.0")
    for r in range(2*nS): e(f"v_mov_b32 v{Sb[0]+r}, -4.0")
    for r in range(2*nP): e(f"v_mov_b32 v{Pb[0]+r}, 0x3d003d00")
    for r in range(4): e(f"v_mov_b32 v{ones+r}, 0x3f803f80")
    for r in range(16): e(f"v_mov_b32 v{lsum+r}, 0")
    for r in range(4): e(f"v_mov_b32 v{lt+r}, 0")
    e("v_and_b32 v4, 63, v0"); e("v_lshlrev_b32 v4, 4, v4")
    e("v_and_b32 v5, 63, v0"); e("v_lshlrev_b32 v5, 3, v5")
    e("s_mov_b32 s24, 0")
    e("s_lshl_b32 s25, s2, 17")
    e("s_barrier")
    e("s_memtime s[30:31]"); e("s_memrealtime s[32:33]"); e("s_waitcnt lgkmcnt(0)")
    e(".p2align 6")
    e("L_loop:")
    mn = "v_mfma_f32_32x32x16_bf16" if big else "v_mfma_f32_16x16x32_bf16"
    fr = 0
    for half in range(2):
        cur, nxt = half, 1 - half
        mf = []
        for j in range(8):
            f = fb + (fr % NF)*4; fr += 1
            for g in range(ng):
                if big:
                    d = Sb[nxt] + g*16; first = j == 0; q = nO + (g*8 + j)*4
                else:
                    kt, st = j // 4, j % 4
                    d = Sb[nxt] + (g*2 + kt)*4; first = st == 0; q = nO + (g*4 + st)*4
                c = NEGb + g*DR if first else d
                mf.append(f"{mn} v[{d}:{d+DR-1}], a[{f}:{f+3}], a[{q}:{q+3}], v[{c}:{c+DR-1}]")
        for j in range(8):
            f = fb + (fr % NF)*4; fr += 1
            for g in range(ng):
                if big:
                    ks, dt = j // 4, j % 4
                    p = Pb[nxt] + g*8 + ks*4; o = (dt*ng + g)*16
                else:
                    p = Pb[nxt] + g*4; o = (j*ng + g)*4
                mf.append(f"{mn} a[{o}:{o+DR-1}], a[{f}:{f+3}], v[{p}:{p+3}], a[{o}:{o+DR-1}]")
        n = len(mf)
        gaps = [[] for _ in range(n)]
        step = n // nS
        if 'sm' in opts:
            for idx in range(nS):
                gi = idx*step
                t = tmp + (idx % 8)
                gaps[gi].append(f"v_exp_f32 v{t}, v{Sb[cur]+idx}")
                g2 = gi + step - 1
                if 'add' in opts:
                    tp = tmp + ((idx-1) % 8)
                    gaps[g2].append(f"v_add_f32 v{lt+(idx%2)}, v{lt+(idx%2)}, v{tp}")
                if idx % 2 == 0:
                    i2 = (idx - 2) % nS
                    pbuf = cur if idx >= 2 else nxt
                    gaps[g2].append(f"v_cvt_pk_bf16_f32 v{Pb[pbuf]+i2//2}, v{tmp+((idx-2)%8)}, v{tmp+((idx-1)%8)}")
        if 'msum' in opts:
            k = nP // 4
            for i in range(k):
                p = Pb[nxt] + i*4
                pos = n//2 + (n//2//k)*i + 1
                gaps[pos].append(f"v_mfma_f32_16x16x32_bf16 v[{lsum+(i%4)*4}:{lsum+(i%4)*4+3}], v[{ones}:{ones+3}], v[{p}:{p+3}], v[{lsum+(i%4)*4}:{lsum+(i%4)*4+3}]")
        if 'lds' in opts:
            D = 4
            for j in range(16):
                jj = (j + D) % 16
                f = fb + ((half*16 + j + D) % NF)*4
                gi = j*ng
                off = ((jj*1024) + half*16384) % 65536
                if jj < 8:
                    gaps[gi].append(f"ds_read_b128 a[{f}:{f+3}], v4 offset:{off}")
                else:
                    gaps[gi].append(f"ds_read_b64_tr_b16 a[{f}:{f+1}], v5 offset:{off}")
                    gaps[gi + (ng-1)].append(f"ds_read_b64_tr_b16 a[{f+2}:{f+3}], v5 offset:{off+512}")
        if 'dma' in opts:
            nd = 16 // nw
            pos = [(n // nd) * i + 3 for i in range(nd)]
            for i, pp in enumerate(pos):
                if i == 0:
                    gaps[pp-1].append(f"s_add_u32 m0, s21, {65536 + half*16384 + 0}")
                gaps[pp].append(f"buffer_load_dwordx4 v3, s[8:11], s25 offen offset:{(i*1024) % 4096} lds")
            gaps[n-1].append("s_add_u32 s25, s25, 4096")
            gaps[n-1].append("s_and_b32 s25, s25, 0x3ffffff")
        for i in range(n):
            if 'lds' in opts and i % (2*ng) == 0:
                j = i // ng
                cnt = 0
                for jj in range(j+2, j+4):
                    cnt += 1 if (jj % 16) < 8 else 2
                e(f"s_waitcnt lgkmcnt({cnt})")
            e(mf[i])
            for x in gaps[i]: e(x)
        if 'bar' in opts and half == 1:
            if 'dma' in opts: e(f"s_waitcnt vmcnt({2*16//nw})")
            e("s_barrier")
    e("s_add_u32 s24, s24, 1"); e(f"s_cmp_lt_u32 s24, {iters}"); e("s_cbranch_scc1 L_loop")
    e("s_memtime s[34:35]"); e("s_memrealtime s[36:37]"); e("s_waitcnt lgkmcnt(0) vmcnt(0)")
    e("s_sub_u32 s34, s34, s30"); e("s_sub_u32 s36, s36, s32")
    e("v_mov_b32 v6, s34"); e("v_mov_b32 v7, s36")
    e("s_lshl_b32 s26, s2, 3"); e("v_mov_b32 v2, s26")
    e("v_cmp_eq_u32 vcc, 0, v0"); e("s_and_saveexec_b64 s[40:41], vcc"); e("s_cbranch_execz L_end")
    e("buffer_store_dwordx2 v[6:7], v2, s[12:15], 0 offen")
    e("L_end:"); e("s_endpgm")
    e('.section .rodata,"a"'); e(".p2align 6"); e(f".amdhsa_kernel {name}")
    e(f"  .amdhsa_next_free_vgpr {nv}"); e("  .amdhsa_next_free_sgpr 64"); e(f"  .amdhsa_accum_offset {acc}")
    e("  .amdhsa_group_segment_fixed_size 0"); e("  .amdhsa_kernarg_size 16"); e("  .amdhsa_user_sgpr_count 2")
    e("  .amdhsa_user_sgpr_kernarg_segment_ptr 1"); e("  .amdhsa_system_sgpr_workgroup_id_x 1"); e(".end_amdhsa_kernel")
    return "\n".join(L) + "\n"

if __name__ == '__main__':
    specs = []
    full = {'sm', 'lds', 'dma', 'bar'}
    for nw in (4, 8):
        for shape in (32, 16):
            for tag, opts in [('z', {'zero'}), ('a', set()), ('e', full | {'add'}), ('m', full | {'msum'}), ('n', full), ('y', full | {'add', 'zero'})]:
                fn = f"mb/mb2_{nw}_{shape}{tag}.s"
                open('code/' + fn, 'w').write(gen('mb_kernel', nw, shape, opts))
                specs.append(f"{fn}:mb_kernel:256:{nw*64}:131072")
    print(' '.join(specs))
```

```python
import re, sys
sys.path.insert(0, 'mb')
from mb2 import gen
def stamp(asm, nw):
    ins = """s_memtime s[44:45]
s_memrealtime s[46:47]
s_waitcnt lgkmcnt(0)
s_sub_u32 s44, s44, s30
s_sub_u32 s46, s46, s32
v_mov_b32 v6, s44
v_mov_b32 v7, s46
s_lshl_b32 s26, s2, 9
s_lshl_b32 s27, s24, 3
s_add_u32 s26, s26, s27
s_add_u32 s26, s26, 0x10000
v_lshlrev_b32 v2, 22, v0
v_add_u32 v2, s26, v2
buffer_store_dwordx2 v[6:7], v2, s[12:15], 0 offen
"""
    return asm.replace("s_add_u32 s24, s24, 1\n", ins + "s_add_u32 s24, s24, 1\n")
full = {'sm', 'lds', 'dma', 'add'}
specs = []
for nw, shape in ((4, 32), (8, 16)):
    for tag, opts in [('a', set()), ('e', full)]:
        fn = f"mb/mb3_{nw}_{shape}{tag}.s"
        open('code/' + fn, 'w').write(stamp(gen('mb_kernel', nw, shape, opts, iters=64), nw))
        specs.append(f"{fn}:mb_kernel:256:{nw*64}:131072")
print(' '.join(specs))
```

```python
class Asm:
    def __init__(self):
        self.L = []
        self.uid = 0
    def __call__(self, s):
        for line in s.split('\n'):
            line = line.strip()
            if line: self.L.append(line)
    def label(self, name): self.L.append(name + ':')
    def newlabel(self, p='L'):
        self.uid += 1
        return f"{p}_{self.uid}"
    def nop(self, n):
        while n > 0:
            k = min(n, 16)
            self.L.append(f"s_nop {k-1}")
            n -= k
    def text(self):
        out = []
        for l in self.L:
            if l.endswith(':') or l.startswith('.') or l.startswith(';'): out.append(l)
            else: out.append('    ' + l)
        return '\n'.join(out) + '\n'

def vr(b, n=1, p='v'):
    return f"{p}{b}" if n == 1 else f"{p}[{b}:{b+n-1}]"
def ar(b, n=1): return vr(b, n, 'a')
def sr(b, n=1): return vr(b, n, 's')

def kernel_begin(a, name):
    a(f".globl {name}")
    a(".p2align 8")
    a(f".type {name},@function")
    a.label(name)

def kernel_desc(name, nvgpr, nsgpr, accum):
    return f""".p2align 6
.amdhsa_kernel {name}
  .amdhsa_next_free_vgpr {nvgpr}
  .amdhsa_next_free_sgpr {nsgpr}
  .amdhsa_accum_offset {accum}
  .amdhsa_group_segment_fixed_size 0
  .amdhsa_kernarg_size 120
  .amdhsa_user_sgpr_count 2
  .amdhsa_user_sgpr_kernarg_segment_ptr 1
  .amdhsa_system_sgpr_workgroup_id_x 1
.end_amdhsa_kernel
"""

def srd(a, d, base, nbytes, off=0):
    if off:
        a(f"s_add_u32 s{d}, s{base}, {off}")
        a(f"s_addc_u32 s{d+1}, s{base+1}, 0")
    else:
        a(f"s_mov_b32 s{d}, s{base}")
        a(f"s_mov_b32 s{d+1}, s{base+1}")
    a(f"s_mov_b32 s{d+2}, {nbytes}")
    a(f"s_mov_b32 s{d+3}, 0x20000")

import struct
def f32(x):
    return "0x%08x" % struct.unpack('<I', struct.pack('<f', x))[0]

def allreduce(a, regs, tmps, op='v_add_f32', steps=(1, 2, 4, 8, 16, 32)):
    n = len(regs)
    def pad(k):
        if n < k + 1: a.nop(k + 1 - n) if (k + 1 - n) > 0 else None
    a.nop(2)
    for s in steps:
        if s <= 8:
            ctl = {1: 'quad_perm:[1,0,3,2]', 2: 'quad_perm:[2,3,0,1]', 4: 'row_half_mirror', 8: 'row_mirror'}[s]
            for r in regs:
                a(f"{op}_dpp v{r}, v{r}, v{r} {ctl} row_mask:0xf bank_mask:0xf")
            pad(2)
        else:
            ins = 'v_permlane16_swap_b32' if s == 16 else 'v_permlane32_swap_b32'
            for r, t in zip(regs, tmps): a(f"v_mov_b32 v{t}, v{r}")
            pad(2);
            if n == 1: a.nop(1)
            for r, t in zip(regs, tmps): a(f"{ins} v{t}, v{r}")
            pad(1)
            for r, t in zip(regs, tmps): a(f"{op} v{r}, v{r}, v{t}")
            pad(2)
```

```python
import math
NAME = 'adaLN_cond__mha_block_cached__moe_arch_mod__prompt'
KA_X, KA_K, KA_V, KA_WQ, KA_WO, KA_BX, KA_WR, KA_WG, KA_WU, KA_WD, KA_C, KA_WMOD, KA_OUT, KA_DBG, KA_WS = [8*i for i in range(15)]
WS_MOD  = 0
WS_MODQ = 0x4000
WS_CAND = 0x6000
WS_PART = 0x8000
WS_XF   = 0x100000
WS_X2   = 0x300000
WS_H2   = 0x500000
WS_OF   = 0x800000
WS_SIZE = 0x1800000
CS = math.log2(math.e) / math.sqrt(128.0)
EPS = 1e-5
WS_PART1 = 0x1800000
WS_CROW  = 0x40000
WS_PART2 = 0xC0000
WS_SIZE  = 0x2000000
DB_CNT1, DB_KEY, DB_CNT2, DB_CNT3 = 0, 32, 33, 48
NFFN = 112
WS_FLAG = 0x38000
FL_F1, FL_KEYS, FL_F3, FL_SIZE = 0, 2048, 10240, 12288
```

```python
from fused import *
LB = int([x[3:] for x in sys.argv if x.startswith('lb=')][0]) if any(x.startswith('lb=') for x in sys.argv) else 10
NBR = LB + 1
AA, AA2, AA3, VP, VX, VM, XT = 184, 188, 192, 196, 197, 198, XV
ACC, AF = 40, [72, 88, 104]
X, WR, WG, WU, WD, GA, SB, GB, T = 120, 128, 136, 152, 168, 200, 216, 232, 8
CB = AF[2]; XF_, WRF = AF[0], AF[1]

def tail_setup(p):
    p("v_mov_b32 v196, v5") if False else None
    p("v_lshrrev_b32 v36, 2, v3"); p("v_lshl_add_u32 v36, v4, 2, v36"); p("v_bfe_u32 v37, v36, 1, 2"); p("v_lshlrev_b32 v37, 1, v37")
    p("v_and_b32 v38, 1, v3"); p("v_lshlrev_b32 v38, 3, v38"); p("v_lshl_add_u32 v38, v36, 7, v38"); p("v_bfe_u32 v36, v3, 1, 1")
    for nt in range(4):
        p(f"v_add_u32 v{AA+nt}, {2*nt}, v36"); p(f"v_xor_b32 v{AA+nt}, v{AA+nt}, v37"); p(f"v_lshl_add_u32 v{AA+nt}, v{AA+nt}, 4, v38")
        p(f"v_add_u32 v{AA2+nt}, 0x10000, v{AA+nt}"); p(f"v_add_u32 v{AA3+nt}, 0x20000, v{AA+nt}")
    p(f"s_lshl_b32 s{sOR}, s{sKH}, 23"); p(f"s_lshl_b32 s{t1}, s{sRB}, 13"); p(f"s_add_u32 s{sOR}, s{sOR}, s{t1}")
    p(f"s_add_u32 s{sOR}, s{sOR}, s{sWL}"); p(f"s_add_u32 s{sOR}, s{sOR}, {WS_OF}")

def tail(p):
    p("; MARKG")
    def bload(i):
        r = (i % NBR)*8
        return [I(f"buffer_load_dwordx4 {ar(r+4*g,4)}, v{XT}, {R(RWS)}, s{sOR} offen offset:{g*1024}{'' if 'plainB' in OPT else ' sc1'}", v=('B', i)) for g in range(2)]
    bump = f"s_add_u32 s{sOR}, s{sOR}, 131072"
    def areads(i):
        st, k = i // 4, i % 4
        res = []
        for nt in range(4):
            f = AF[i % 3] + nt*4
            o = STB[st % 8] + k*4096
            av = (AA, AA2, AA3)[o // 65536] + nt; o %= 65536
            res.append(I(f"ds_read_b64_tr_b16 {vr(f,2)}, v{av} offset:{o}", l=('A', i)))
            res.append(I(f"ds_read_b64_tr_b16 {vr(f+2,2)}, v{av} offset:{o+2048}", l=('A', i)))
        return res
    for i in range(LB):
        p(bload(i)); p(bump)
        if i == 3: p(areads(0)); p(areads(1))
    owner_regs(p, VX, VM, VP)
    for i in range(64):
        st, k = i // 4, i % 4
        pre = []
        if k == 2 and 1 <= st and st + 1 < 16: pre += [WV({('W', st+1), ('B', i)}), "s_barrier"]
        else: pre.append(WV({('B', i)}))
        pre.append(WL({('A', i)}))
        p(pre)
        if i in (0, 16, 32, 48): p("; MARK" + {0: 'U', 16: 'V', 32: 'W', 48: 'X'}[i])
        nx = areads(i+2) if i + 2 < 64 else []
        kk = i % 4
        dst = 5 + i // 4
        vm = bload(i + LB) if i + LB < 64 else []
        dm = wo_stage(dst)[kk] if dst < 16 else None
        m = 0
        for nt in range(4):
            for g in range(2):
                o = ACC + (g*4 + nt)*4
                p(f"{MFMA} {vr(o,4)}, {vr(AF[i%3]+nt*4,4)}, {ar((i%NBR)*8+g*4,4)}, {'0' if i == 0 else vr(o,4)}")
                if m == 0 and dm and dm[0]: p(dm[0])
                if m < 4 and nx: p(nx[2*m]); p(nx[2*m+1])
                if m == 4 and vm: p(vm[0])
                if m == 5 and vm: p(vm[1])
                if m == 6 and vm: p(bump)
                if m == 6 and dm: p(dm[1])
                if m == 7 and dm and dm[2]: p(dm[2])
                m += 1
    p("; MARKH")
    p(f"s_lshl_b32 s{t0}, s{sRB}, 1"); p(f"s_add_u32 s{t0}, s{t0}, s{sKH}"); p(f"s_lshl_b32 s{t0}, s{t0}, 3"); p(f"s_add_u32 s{t0}, s{t0}, s{sCB}")
    p(f"s_lshl_b32 s{t0}, s{t0}, 15"); p(f"s_lshl_b32 s{t1}, s{sW}, 13"); p(f"s_add_u32 s{t0}, s{t0}, s{t1}")
    p(f"s_add_u32 s{t0}, s{t0}, {WS_PART1}"); p(f"s_add_u32 s{t1}, s{t0}, 4096")
    for g in range(2):
        for nt in range(4):
            p(f"buffer_store_dwordx4 {vr(ACC+(g*4+nt)*4,4)}, v{XT}, {R(RWS)}, s{t0+g} offen offset:{nt*1024} sc1")
    p(f"s_lshl_b32 s{t2}, s{sRB}, 7"); p(f"s_add_u32 s{t2}, s{t2}, {WS_F1}")
    p(f"s_lshl_b32 s{t3}, s{sO}, 2"); p(f"v_mov_b32 v5, s{t3}"); p(f"v_mov_b32 v6, s{sTAG}")
    p(f"v_add_u32 v7, {LDS_MV}, v{VM}")
    for base, idx in ((GA, 0), (SB, 1), (CB, 2), (GB, 3)):
        for k in range(4): p(f"ds_read_b128 {vr(base+4*k,4)}, v7 offset:{idx*2048 + 2*cm(k)}")
        if idx == 2: p("s_waitcnt lgkmcnt(8)")
    for e in range(8): p(f"v_accvgpr_read_b32 v{X+e}, a{aX+e}"); p(f"v_accvgpr_read_b32 v{WR+e}, a{aWR+e}")
    for k in range(4): unpack4(p, X+2*k, XF_+4*k)
    for k in range(4): unpack4(p, WR+2*k, WRF+4*k)
    for e in range(48): p(f"v_accvgpr_read_b32 v{WG+e}, a{aWG+e}")
    set_flag(p, "F1", f"buffer_store_dword v6, v5, {R(RWS)}, s{t2} offen sc1", 1)
    w0_only(p, "F1_done")
    p("v_lshlrev_b32 v5, 2, v3")
    wait_tags(p, "F1W", [f"buffer_load_dword v6, v5, {R(RWS)}, s{t2} offen sc1"], [6])
    p.label("F1_done")
    p(f"s_lshl_b32 s{t0}, s{sRB}, 19"); p(f"s_lshr_b32 s{t1}, s{sO}, 1"); p(f"s_lshl_b32 s{t1}, s{t1}, 12"); p(f"s_add_u32 s{t0}, s{t0}, s{t1}")
    p(f"s_and_b32 s{t1}, s{sO}, 1"); p(f"s_lshl_b32 s{t1}, s{t1}, 7"); p(f"s_add_u32 s{t0}, s{t0}, s{t1}")
    p(f"s_lshl_b32 s{t1}, s{sW}, 16"); p(f"s_add_u32 s{t0}, s{t0}, s{t1}"); p(f"s_add_u32 s{t0}, s{t0}, {WS_PART1}")
    p("s_barrier")
    for khh in range(2):
        for c in range(2):
            p(f"s_add_u32 s{t1}, s{t0}, {khh*262144 + c*32768}")
            for m in range(2):
                p(f"buffer_load_dwordx4 {vr(ACC+khh*16+(c*2+m)*4,4)}, v{VP}, {R(RWS)}, s{t1} offen offset:{m*2048} sc1")
    p("v_and_b32 v7, 7, v1"); p("v_lshlrev_b32 v5, 2, v7"); p("v_lshl_add_u32 v6, v2, 5, v5")
    p("s_waitcnt vmcnt(0) lgkmcnt(0)")
    p("; MARKI")
    R16 = [ACC+e for e in range(16)]
    D16 = [ACC+16+e for e in range(16)]
    for e in range(16): p(f"v_add_f32 v{ACC+e}, v{ACC+e}, v{ACC+16+e}")
    rnd_pairs(p, R16)
    for e in range(16): p(f"v_mul_f32 v{ACC+e}, v{ACC+e}, v{GA+e}")
    rnd_pairs(p, R16)
    for e in range(16): p(f"v_add_f32 v{ACC+e}, v{ACC+e}, v{XF_+e}")
    for e in range(8): p(f"v_cvt_pk_bf16_f32 v{X+e}, v{ACC+2*e}, v{ACC+2*e+1}")
    for k in range(4): unpack4(p, X+2*k, ACC+4*k)
    p(f"v_add_f32 v{T}, v{ACC}, v{ACC+1}"); p(f"v_mul_f32 v{T+1}, v{ACC}, v{ACC}")
    for e in range(2, 16): p(f"v_add_f32 v{T}, v{T}, v{ACC+e}")
    for e in range(1, 16): p(f"v_fmac_f32 v{T+1}, v{ACC+e}, v{ACC+e}")
    red_ror(p, [T, T+1], [T+2, T+3], ['row_ror:8'])
    p(f"ds_write_b32 v6, v{T}"); p(f"ds_write_b32 v6, v{T+1} offset:128")
    p("s_waitcnt lgkmcnt(0)")
    p("s_barrier")
    for w in range(4):
        p(f"ds_read_b32 v{T+w}, v5 offset:{w*32}"); p(f"ds_read_b32 v{T+4+w}, v5 offset:{128+w*32}")
    p("s_waitcnt lgkmcnt(0)")
    def sum4x2():
        p(f"v_add_f32 v{T}, v{T}, v{T+1}"); p(f"v_add_f32 v{T+2}, v{T+2}, v{T+3}")
        p(f"v_add_f32 v{T+4}, v{T+4}, v{T+5}"); p(f"v_add_f32 v{T+6}, v{T+6}, v{T+7}")
        p(f"v_add_f32 v{T}, v{T}, v{T+2}"); p(f"v_add_f32 v{T+4}, v{T+4}, v{T+6}")
    sum4x2()
    p(f"v_mul_f32 v{T}, {f32(1/512)}, v{T}"); p(f"v_mul_f32 v{T+4}, {f32(1/512)}, v{T+4}")
    p(f"v_fma_f32 v{T+4}, -v{T}, v{T}, v{T+4}"); p(f"v_max_f32 v{T+4}, 0, v{T+4}")
    rnd_bf16(p, T); rnd_bf16(p, T+4)
    p(f"v_add_f32 v{T+4}, {f32(EPS)}, v{T+4}"); rnd_bf16(p, T+4)
    p(f"v_sqrt_f32 v{T+4}, v{T+4}")
    for e in range(16): p(f"v_sub_f32 v{ACC+16+e}, v{ACC+e}, v{T}")
    rnd_bf16(p, T+4)
    p(f"v_rcp_f32 v{T+4}, v{T+4}")
    rnd_pairs(p, D16)
    for e in range(16): p(f"v_mul_f32 v{ACC+16+e}, v{ACC+16+e}, v{T+4}")
    rnd_pairs(p, D16)
    for e in range(16): p(f"v_mul_f32 v{ACC+16+e}, v{ACC+16+e}, v{CB+e}")
    rnd_pairs(p, D16)
    for e in range(16): p(f"v_add_f32 v{ACC+16+e}, v{ACC+16+e}, v{SB+e}")
    H2P = WR
    for e in range(8): p(f"v_cvt_pk_bf16_f32 v{H2P+e}, v{ACC+16+2*e}, v{ACC+16+2*e+1}")
    for k in range(4): unpack4(p, H2P+2*k, ACC+16+4*k)
    p(f"v_mul_f32 v{T}, v{ACC+16}, v{WRF}")
    for e in range(1, 16): p(f"v_fmac_f32 v{T}, v{ACC+16+e}, v{WRF+e}")
    red_ror(p, [T], [T+2], ['row_ror:8'])
    p(f"ds_write_b32 v6, v{T} offset:256")
    for e in range(16): p(f"v_mul_f32 v{ACC+16+e}, v{ACC+16+e}, v{GB+e}")
    rnd_pairs(p, D16)
    for e in range(16): p(f"v_add_f32 v{ACC+16+e}, v{ACC+16+e}, v{ACC+e}")
    OUTP = GA
    for e in range(8): p(f"v_cvt_pk_bf16_f32 v{OUTP+e}, v{ACC+16+2*e}, v{ACC+16+2*e+1}")
    p("s_waitcnt lgkmcnt(0)")
    p("s_barrier")
    for w in range(4): p(f"ds_read_b32 v{T+w}, v5 offset:{256+w*32}")
    p(f"s_lshl_b32 s{t0}, s{sSLOT}, 3"); p(f"s_sub_u32 s{t0}, 2047, s{t0}"); p(f"v_sub_u32 v{T+5}, s{t0}, v7")
    p("s_waitcnt lgkmcnt(0)")
    p(f"v_add_f32 v{T}, v{T}, v{T+1}"); p(f"v_add_f32 v{T+2}, v{T+2}, v{T+3}"); p(f"v_add_f32 v{T}, v{T}, v{T+2}")
    rnd_bf16(p, T)
    p(f"v_ashrrev_i32 v{T+1}, 31, v{T}"); p(f"v_or_b32 v{T+1}, 0x80000000, v{T+1}"); p(f"v_xor_b32 v{T}, v{T}, v{T+1}")
    p(f"v_and_b32 v{T}, 0xffff0000, v{T}"); p(f"v_or_b32 v{T}, v{T}, v{T+5}")
    p(f"v_mov_b32 v{T+2}, v{T}")
    allreduce(p, [T+2], [T+1], op='v_max_u32', steps=(1, 2, 4))
    p(f"v_cmp_eq_u32 vcc, v{T}, v{T+2}")
    p(f"v_mov_b32 v{T+3}, s{sTAG}")
    for k in range(4):
        g = ACC + 4*k
        p(f"v_mov_b32 v{g}, v{H2P+2*k}"); p(f"v_mov_b32 v{g+1}, s{sTAG}"); p(f"v_mov_b32 v{g+2}, v{H2P+2*k+1}"); p(f"v_mov_b32 v{g+3}, s{sTAG}")
    p(f"v_lshrrev_b32 v{T+4}, 1, v{VM}")
    p("v_lshlrev_b32 v5, 11, v1")
    p(f"s_lshl_b32 s{t0}, s{sSLOT}, 12"); p(f"s_add_u32 s{t0}, s{t0}, {WS_CROW}")
    p(f"s_lshl_b32 s{t1}, s{sSLOT}, 3"); p(f"s_add_u32 s{t1}, s{t1}, {WS_KEYS}")
    p("s_mov_b64 s[26:27], vcc")
    p("s_mov_b64 exec, vcc")
    for k in range(4): p(f"buffer_store_dwordx4 {vr(ACC+4*k,4)}, v{VM}, {R(RWS)}, s{t0} offen offset:{2*cm(k)} sc1")
    w0_only(p, "F2_sig")
    p("s_mov_b64 exec, 0xffff")
    p(f"buffer_store_dwordx2 {vr(T+2,2)}, v5, {R(RWS)}, s{t1} offen sc1")
    p("s_mov_b64 exec, s[26:27]")
    p.label("F2_sig")
    for k in range(4): p(f"buffer_store_dwordx2 {vr(X+2*k,2)}, v{T+4}, {R(RWS)}, s{t0} offen offset:{2048+cm(k)} sc1")
    for k in range(4): p(f"buffer_store_dwordx2 {vr(OUTP+2*k,2)}, v{VX}, {R(ROUT)}, s{sROW} offen offset:{cm(k)} sc1")
    p("s_not_b64 exec, s[26:27]")
    for k in range(4): p(f"buffer_store_dwordx2 {vr(OUTP+2*k,2)}, v{VX}, {R(ROUT)}, s{sROW} offen offset:{cm(k)}")
    p("s_mov_b64 exec, -1")
    p("; MARKJ")
    p(f"s_lshl_b32 s3, s{sSLOT}, 2"); p(f"s_add_u32 s3, s3, {WS_DONE}")
    p("v_mov_b32 v6, 0")
    p(f"s_cmp_lt_u32 s2, {NFFN}"); p("s_cbranch_scc1 FT_go")
    p(f"s_cmp_ge_u32 s2, {256 - NFIN}"); p("s_cbranch_scc1 FT_go")
    set_flag(p, "FD0", f"buffer_store_dword v{T+3}, v6, {R(RWS)}, s3 offen sc1", 1)
    p("s_endpgm")
    p.label("FT_go")
    w0_only(p, "F2_b")
    p(f"s_and_b32 s{t2}, s2, 15"); p(f"s_lshl_b32 s{t2}, s{t2}, 11"); p(f"s_add_u32 s{t2}, s{t2}, {WS_KEYS}")
    wait_tags(p, "F2W", [f"buffer_load_dwordx4 {vr(T+8,4)}, v{XT}, {R(RWS)}, s{t2} offen sc1",
                         f"buffer_load_dwordx4 {vr(T+12,4)}, v{XT}, {R(RWS)}, s{t2} offen offset:1024 sc1"], [T+9, T+11, T+13, T+15], slp=4)
    p(f"v_max_u32 v{T+8}, v{T+8}, v{T+10}"); p(f"v_max3_u32 v{T+8}, v{T+8}, v{T+12}, v{T+14}")
    allreduce(p, [T+8], [T+9], op='v_max_u32')
    p(f"ds_write_b32 v6, v{T+8} offset:512")
    p.label("F2_b")
    p("s_waitcnt vmcnt(0) lgkmcnt(0)")
    p("s_barrier")
    p("ds_read_b32 v4, v6 offset:512")
    w0_only(p, "FD1")
    p("s_mov_b64 exec, 1")
    p(f"buffer_store_dword v{T+3}, v6, {R(RWS)}, s3 offen sc1")
    p("s_mov_b64 exec, -1")
    p.label("FD1")
    p("v_lshrrev_b32 v5, 1, v0"); p("v_lshlrev_b32 v5, 4, v5")
    p("s_waitcnt lgkmcnt(0)")
    p(f"v_readfirstlane_b32 s{sKEY}, v4")
    p(f"s_and_b32 s{sWROW}, s{sKEY}, 0x7ff"); p(f"s_sub_u32 s{sWROW}, 2047, s{sWROW}")
    p(f"s_lshr_b32 s{sWC}, s{sWROW}, 3"); p(f"s_lshl_b32 s{sWC}, s{sWC}, 12"); p(f"s_add_u32 s{sWC}, s{sWC}, {WS_CROW}")
    p("; MARKK")
    p(f"s_cmp_ge_u32 s2, {NFFN}"); p("s_cbranch_scc1 FT_FIN")
    wait_tags(p, "FRW", [f"buffer_load_dwordx4 {vr(T+8,4)}, v5, {R(RWS)}, s{sWC} offen sc1"], [T+9, T+11])
    p(f"v_lshlrev_b32 v{T}, 16, v{T+8}"); p(f"v_and_b32 v{T+1}, 0xffff0000, v{T+8}")
    p(f"v_lshlrev_b32 v{T+2}, 16, v{T+10}"); p(f"v_and_b32 v{T+3}, 0xffff0000, v{T+10}")
    G8 = ACC
    for mm, base in ((0, WG), (1, WU)):
        for i in range(4):
            unpack8(p, base+4*i, ACC+16)
            for e in range(8):
                p(f"v_mul_f32 v{G8+8*mm+e}, v{T+i}, v{ACC+16+e}" if i == 0 else f"v_fmac_f32 v{G8+8*mm+e}, v{T+i}, v{ACC+16+e}")
    red_ror(p, R16, D16, ['quad_perm:[2,3,0,1]', 'row_ror:4', 'row_ror:8'])
    p("v_and_b32 v6, 1, v0"); p("v_lshlrev_b32 v6, 5, v6"); p("v_lshl_add_u32 v6, v2, 7, v6")
    p(f"ds_write_b128 v6, {vr(G8,4)} offset:1024"); p(f"ds_write_b128 v6, {vr(G8+4,4)} offset:1040")
    p(f"ds_write_b128 v6, {vr(G8+8,4)} offset:1088"); p(f"ds_write_b128 v6, {vr(G8+12,4)} offset:1104")
    p("v_lshlrev_b32 v5, 2, v3")
    p("s_waitcnt lgkmcnt(0)")
    p("s_barrier")
    for w in range(4):
        p(f"ds_read_b32 v{T+w}, v5 offset:{1024+w*128}"); p(f"ds_read_b32 v{T+4+w}, v5 offset:{1024+w*128+64}")
    p(f"s_lshl_b32 s{t0}, s{sW}, 2")
    p("s_waitcnt lgkmcnt(0)")
    sum4x2()
    rnd_bf16(p, T); rnd_bf16(p, T+4)
    p(f"v_mul_f32 v{T+1}, {f32(-LOG2E)}, v{T}"); p(f"v_exp_f32 v{T+1}, v{T+1}"); p("s_nop 0")
    p(f"v_add_f32 v{T+1}, 1.0, v{T+1}"); p(f"v_rcp_f32 v{T+1}, v{T+1}"); p("s_nop 0")
    p(f"v_mul_f32 v{T}, v{T}, v{T+1}"); rnd_bf16(p, T)
    p(f"v_mul_f32 v{T}, v{T}, v{T+4}"); rnd_bf16(p, T)
    p("s_nop 0")
    for i in range(4):
        p(f"v_readlane_b32 s{16+i}, v{T}, s{t0}")
        if i < 3: p(f"s_add_u32 s{t0}, s{t0}, 1")
    p.nop(2)
    for i in range(4):
        unpack8(p, WD+4*i, ACC+16)
        for e in range(8):
            p(f"v_mul_f32 v{ACC+e}, s{16+i}, v{ACC+16+e}" if i == 0 else f"v_fmac_f32 v{ACC+e}, s{16+i}, v{ACC+16+e}")
    p("v_lshlrev_b32 v5, 5, v0")
    p(f"ds_write_b128 v5, {vr(ACC,4)} offset:8192"); p(f"ds_write_b128 v5, {vr(ACC+4,4)} offset:8208")
    p("v_lshlrev_b32 v6, 3, v0")
    p("s_waitcnt lgkmcnt(0)")
    p("s_barrier")
    for w in range(4): p(f"ds_read_b64 {vr(T+2*w,2)}, v6 offset:{8192+w*2048}")
    p(f"s_lshl_b32 s{t0}, s2, 12"); p(f"s_add_u32 s{t0}, s{t0}, {WS_PART2}")
    p("v_lshlrev_b32 v6, 4, v0")
    p(f"v_mov_b32 v{T+9}, s{sTAG}"); p(f"v_mov_b32 v{T+11}, s{sTAG}")
    p("s_waitcnt lgkmcnt(0)")
    for e in range(2):
        p(f"v_add_f32 v{T+e}, v{T+e}, v{T+2+e}"); p(f"v_add_f32 v{T+4+e}, v{T+4+e}, v{T+6+e}")
    for e in range(2): p(f"v_add_f32 v{T+8+2*e}, v{T+e}, v{T+4+e}")
    p(f"buffer_store_dwordx4 {vr(T+8,4)}, v6, {R(RWS)}, s{t0} offen sc1")
    p("s_endpgm")
    p.label("FT_FIN")
    p(f"s_sub_u32 s{sFF}, s2, {256 - NFIN}")
    p("v_and_b32 v5, 7, v0"); p("v_lshlrev_b32 v7, 2, v5"); p("v_lshlrev_b32 v24, 3, v5")
    p("v_lshrrev_b32 v25, 3, v0"); p("v_lshlrev_b32 v25, 12, v25"); p("v_lshl_add_u32 v25, v5, 4, v25")
    p(f"s_lshl_b32 s{t1}, s{sFF}, 6")
    p(f"v_add_u32 v26, s{t1}, v24"); p(f"v_add_u32 v26, {LDS_MV + 3*2048}, v26")
    p(f"ds_read_b64 {vr(GB,2)}, v26")
    p(f"s_and_b32 s{t0}, s{sKEY}, 0xffff0000"); p(f"s_ashr_i32 s{t1}, s{t0}, 31"); p(f"s_not_b32 s{t1}, s{t1}")
    p(f"s_or_b32 s{t1}, s{t1}, 0x80000000"); p(f"s_xor_b32 s{t0}, s{t0}, s{t1}"); p(f"s_and_b32 s{t0}, s{t0}, 0xffff0000")
    p(f"v_mov_b32 v27, s{t0}")
    p(f"v_mul_f32 v27, {f32(-LOG2E)}, v27"); p("v_exp_f32 v27, v27"); p("s_nop 0")
    p("v_add_f32 v27, 1.0, v27"); p("v_rcp_f32 v27, v27"); p("s_nop 0")
    rnd_bf16(p, 27)
    w0_only(p, "FDW_done")
    p(f"s_lshr_b32 s{t2}, s{sWROW}, 3"); p(f"s_lshl_b32 s{t2}, s{t2}, 2"); p(f"s_add_u32 s{t2}, s{t2}, {WS_DONE}")
    wait_tags(p, "FDW", [f"buffer_load_dword v28, v6, {R(RWS)}, s{t2} offen sc1"], [28], slp=4)
    p(f"s_lshl_b32 s{t0}, s{sFF}, 6"); p(f"s_add_u32 s{t0}, s{t0}, s{sWC}")
    p(f"s_lshl_b32 s{t1}, s{sFF}, 5"); p(f"s_add_u32 s{t1}, s{t1}, s{sWC}")
    p(f"buffer_load_dword v{X}, v24, {R(RWS)}, s{t0} offen sc1")
    p(f"buffer_load_dword v{X+1}, v7, {R(RWS)}, s{t1} offen offset:2048 sc1")
    p.label("FDW_done")
    p(f"s_lshl_b32 s{sROW}, s{sFF}, 7"); p(f"s_add_u32 s{sROW}, s{sROW}, {WS_PART2}")
    p(f"s_add_u32 s{sG0}, s{sROW}, {32*4096}"); p(f"s_add_u32 s{sG1}, s{sROW}, {64*4096}"); p(f"s_add_u32 s{sO}, s{sROW}, {96*4096}")
    p(f"s_cmp_lt_u32 s{sW}, 2"); p(f"s_cselect_b32 s{sO}, s{sO}, s{sG1}"); p(f"s_cselect_b32 s{sCB}, 1.0, 0")
    p("s_sleep 16")
    wait_tags(p, "F3W", [f"buffer_load_dwordx4 {vr(ACC+4*i,4)}, v25, {R(RWS)}, s{sr_} offen sc1" for i, sr_ in enumerate((sROW, sG0, sG1, sO))],
              [ACC+1+2*i for i in range(8)], slp=2)
    for e in (0, 2):
        p(f"v_add_f32 v{ACC+e}, v{ACC+e}, v{ACC+4+e}"); p(f"v_fma_f32 v{ACC+8+e}, v{ACC+12+e}, s{sCB}, v{ACC+8+e}")
    for e in (0, 2): p(f"v_add_f32 v{ACC+e//2}, v{ACC+e}, v{ACC+8+e}")
    red_ror(p, [ACC, ACC+1], [ACC+4, ACC+5], ['row_ror:8'])
    p("v_lshl_add_u32 v6, v2, 6, v24")
    p(f"ds_write_b64 v6, {vr(ACC,2)} offset:1024")
    p("s_waitcnt lgkmcnt(0)")
    p("s_barrier")
    p("v_cmp_gt_u32 vcc, 8, v0")
    p("s_and_saveexec_b64 s[26:27], vcc")
    p("s_cbranch_execz F_END")
    for w in range(4): p(f"ds_read_b64 {vr(ACC+2*w,2)}, v24 offset:{1024+w*64}")
    unpack4(p, X, ACC+16)
    p("s_waitcnt lgkmcnt(0)")
    for e in range(2):
        p(f"v_add_f32 v{ACC+e}, v{ACC+e}, v{ACC+2+e}"); p(f"v_add_f32 v{ACC+4+e}, v{ACC+4+e}, v{ACC+6+e}")
    R2 = [ACC, ACC+1]
    for e in range(2): p(f"v_add_f32 v{ACC+e}, v{ACC+e}, v{ACC+4+e}")
    rnd_pairs(p, R2)
    for e in range(2): p(f"v_mul_f32 v{ACC+e}, v{ACC+e}, v27")
    rnd_pairs(p, R2)
    for e in range(2): p(f"v_add_f32 v{ACC+e}, v{ACC+e}, v{ACC+16+e}")
    rnd_pairs(p, R2)
    for e in range(2): p(f"v_mul_f32 v{ACC+e}, v{ACC+e}, v{GB+e}")
    rnd_pairs(p, R2)
    for e in range(2): p(f"v_add_f32 v{ACC+e}, v{ACC+e}, v{ACC+18+e}")
    p(f"v_cvt_pk_bf16_f32 v{ACC}, v{ACC}, v{ACC+1}")
    p(f"s_lshl_b32 s{t0}, s{sWROW}, 10"); p(f"s_lshl_b32 s{t1}, s{sFF}, 5"); p(f"s_add_u32 s{t0}, s{t0}, s{t1}")
    p(f"buffer_store_dword v{ACC}, v7, {R(ROUT)}, s{t0} offen")
    p("s_cmp_lg_u32 s2, 255"); p("s_cbranch_scc1 F_END")
    p(f"v_mov_b32 v4, s{sTAG}"); p(f"v_mov_b32 v5, {WS_EPOCH}")
    p("s_mov_b64 exec, 1")
    p(f"buffer_store_dword v4, v5, {R(RWS)}, 0 offen")
```

```python
import sys, math
from asmlib import *
from sched import *
from k0 import rnd_bf16, unpack8, rnd_pairs
from common import NAME, CS, EPS, KA_X, KA_WU, KA_OUT, KA_WS
LOG2E = math.log2(math.e)
MFMA = "v_mfma_f32_16x16x32_bf16"
OPT = set(sys.argv)
WS_EPOCH, WS_F0X, WS_F0M, WS_FO, WS_F1, WS_F3, WS_F0R, WS_KEYS, WS_MP = 0, 0x1000, 0x3000, 0x5000, 0x5800, 0x6000, 0x7000, 0x8000, 0x10000
WS_CROW, WS_PART2, WS_XF, WS_OF, WS_PART1, WS_SIZE = 0x300000, 0x400000, 0x100000, 0x800000, 0x1800000, 0x2000000
WS_DONE = WS_F3
NFIN = 32
sOR = 86
NFFN = 112
SPIN = 1 << 18
XLA = int([x[4:] for x in sys.argv if x.startswith('xla=')][0]) if any(x.startswith('xla=') for x in sys.argv) else 4
SLP = int([x[4:] for x in sys.argv if x.startswith('slp=')][0]) if any(x.startswith('slp=') for x in sys.argv) else 1
WQTH = int([x[5:] for x in sys.argv if x.startswith('wqth=')][0]) if any(x.startswith('wqth=') for x in sys.argv) else 24
LDS_V = 65536
LDS_MQ = 131072
LDS_VOTE = LDS_MQ + 4096
STB = [8192, 24576, 65536, 40960, 81920, 98304, 114688, 139264]
LDS_MV = 155648
F_LDS = 163840
WQ_REGION = [0, 16384, 65536, 32768, 81920, 49152, 98304, 114688]
KA, VA, DK, DV, WA, WAH, DW, XV, MA, XX, FRV = 8, 12, 20, 22, 24, 28, 32, 33, 34, 39, 35
Q = 40
S = [104, 136]
P = [168, 184]
NEG, LS, ONES, TMP = 200, 216, 232, 236
DWO, PFD, MX = 244, 248, 252
XR, HB, MQ = 40, [168, 184], [200, 216]
FSET = [128, 160]
RK, RV, RWQ, RWS, RX, RWO, RPF, RA, RB, RG, RU = 32, 36, 40, 44, 48, 52, 56, 60, 64, 68, 72
RD, ROUT, RWR = 20, 60, 64
aWG, aWU, aWD, aX, aWR = 192, 208, 224, 240, 248
sG0, sG1, sD0 = 12, 13, 15
sW, sH, sQB, sTAG, sK, sV, sWL, sXO, sCNT, sWO, sPW, sPF = 76, 77, 78, 79, 80, 81, 82, 83, 84, 85, 86, 87
t0, t1, t2, t3 = 88, 89, 90, 91
sKH, sRB, sCB, sO, sSLOT, sROW, sW4, sOF, sFF, sKEY, sWROW, sWC = 4, 5, 6, 7, 8, 9, 10, 11, 14, 15, 24, 25
def R(n): return f"s[{n}:{n+3}]"

def kfrag_reads(fs, j, unit):
    kt, st = j // 4, j % 4
    f = FSET[fs] + 4*j
    return [I(f"ds_read_b128 a[{f}:{f+3}], v{KA+st} offset:{(unit % 8)*8192 + kt*4096}", l=('K', unit, j))]
def vfrag_reads(fs, j, unit):
    f = FSET[fs] + 4*j
    o = (unit % 8)*8192
    return [I(f"ds_read_b64_tr_b16 a[{f}:{f+1}], v{VA+j} offset:{o}", l=('V', unit, j)),
            I(f"ds_read_b64_tr_b16 a[{f+2}:{f+3}], v{VA+j} offset:{o+4096}", l=('V', unit, j))]
def qk_half(fs, sb, czero=False):
    mf = []
    for j in range(8):
        kt, st = j // 4, j % 4
        f = FSET[fs] + 4*j
        for g in range(4):
            d = S[sb] + g*8 + kt*4
            q = Q + (g*4 + st)*4
            c = ('0' if czero else vr(NEG + g*4, 4)) if st == 0 else vr(d, 4)
            mf.append((f"{MFMA} {vr(d,4)}, a[{f}:{f+3}], {vr(q,4)}, {c}", (j, g)))
    return mf
def pv_half(fs, pb, czero=False):
    mf = []
    for j in range(8):
        f = FSET[fs] + 4*j
        for g in range(4):
            o = (j*4 + g)*4
            p = P[pb] + g*4
            mf.append((f"{MFMA} {ar(o,4)}, a[{f}:{f+3}], {vr(p,4)}, {'0' if czero else ar(o,4)}", (j, g)))
        if j % 2 == 1:
            g = j // 2
            p = P[pb] + g*4
            mf.append((f"{MFMA} {vr(LS+g*4,4)}, {vr(ONES,4)}, {vr(p,4)}, {'0' if czero else vr(LS+g*4,4)}", None))
    return mf
def sm_stream(sb, pb):
    st = []
    for i in range(32):
        st.append((f"v_exp_f32 v{TMP + i % 8}, v{S[sb]+i}", 8))
        if i >= 3 and i % 2 == 1:
            st.append((f"v_cvt_pk_bf16_f32 v{P[pb]+(i-3)//2}, v{TMP+(i-3)%8}, v{TMP+(i-2)%8}", 4))
    st.append((f"v_cvt_pk_bf16_f32 v{P[pb]+15}, v{TMP+6}, v{TMP+7}", 4))
    return st
def dma_unit(kind, unit):
    base = (unit % 8)*8192 + (0 if kind == 'K' else LDS_V)
    srdn, sreg, vo = ((RK, sK, DK) if kind == 'K' else (RV, sV, DV))
    tag = (kind, unit)
    return [(f"s_add_u32 m0, s{sWL}, {base}", I(f"buffer_load_dwordx4 v{vo}, {R(srdn)}, s{sreg} offen lds", v=tag), None),
            (None, I(f"buffer_load_dwordx4 v{vo+1}, {R(srdn)}, s{sreg} offen offset:1024 lds", v=tag), f"s_add_u32 s{sreg}, s{sreg}, 8192")]
def wo_stage(st):
    out = []
    for k in range(4):
        out.append((f"s_add_u32 m0, s{sW4}, {STB[st % 8]}" if k == 0 else None,
                    I(f"buffer_load_dwordx4 v{DWO+k}, {R(RWO)}, s{sWO} offen offset:{k*1024} lds", v=('W', st)),
                    f"s_add_u32 s{sWO}, s{sWO}, 131072" if k == 3 else None))
    return out
def dma_plain(p, ops):
    for (sb, mem, sa) in ops:
        if sb: p(sb); p("s_nop 0")
        p(mem)
        if sa: p(sa)
def block(halves, dmas=()):
    mf = []; gaps = []; pos = {}
    for hi, (m, usetag, pf) in enumerate(halves):
        for (t, jg) in m:
            if jg is not None: pos[(hi,) + jg] = len(mf)
            mf.append(t); gaps.append(Gap())
    pre = []
    for hi, (m, usetag, pf) in enumerate(halves):
        for j in range(8):
            if pf is not None:
                g = gaps[pos[(hi, j, 0)]]
                for r in pf(j): g.mem.append(r); g.used += 4
            if j % 4 == 0:
                w = WL({usetag + (jj,) for jj in range(j, j+4)})
                i = pos[(hi, j, 0)]
                if i == 0: pre.append(w)
                else: gaps[i-1].salu.append(w)
    if len(halves) == 1: slots = [(0, 1), (0, 2), (0, 5), (0, 6)]
    elif len(dmas) <= 4: slots = [(0, 1), (0, 5), (1, 1), (1, 5)]
    else: slots = [(0, 1), (0, 2), (0, 5), (0, 6), (1, 1), (1, 2), (1, 5), (1, 6)]
    assert len(dmas) <= len(slots)
    for (sb, mem, sa), hj in zip(dmas, slots):
        if sb: gaps[pos[hj + (1,)]].salu.append(sb)
        g = gaps[pos[hj + (2,)]]
        g.mem.append(mem); g.used += 8
        if sa: gaps[pos[hj + (3,)]].salu.append(sa)
    return pre, mf, gaps, pos
def tile_max(p, extra=None):
    for g in range(4):
        b = S[0] + g*8
        p(f"v_max3_f32 v{TMP+g}, v{b}, v{b+1}, v{b+2}")
        p(f"v_max3_f32 v{TMP+g}, v{TMP+g}, v{b+3}, v{b+4}")
        p(f"v_max3_f32 v{TMP+g}, v{TMP+g}, v{b+5}, v{b+6}")
        if extra is None: p(f"v_max_f32 v{TMP+g}, v{TMP+g}, v{b+7}")
        else: p(f"v_max3_f32 v{TMP+g}, v{TMP+g}, v{b+7}, v{extra+g}")
    allreduce(p, [TMP+g for g in range(4)], [TMP+4+g for g in range(4)], op='v_max_f32', steps=(16, 32))
def unpack4(p, src, dst):
    for i in range(2):
        p(f"v_lshlrev_b32 v{dst+2*i}, 16, v{src+i}")
        p(f"v_and_b32 v{dst+2*i+1}, 0xffff0000, v{src+i}")
def red_ror(p, regs, tmps, rors, op='v_add_f32'):
    n = len(regs)
    for ro in rors:
        p.nop(max(0, 3 - n) if ro != rors[0] else 2)
        for r in regs: p(f"{op}_dpp v{r}, v{r}, v{r} {ro} row_mask:0xf bank_mask:0xf")
    allreduce(p, regs, tmps, op=op, steps=(16, 32))
def mksrd(p, d, base, nbytes):
    p(f"s_mov_b32 s{d}, s{base}"); p(f"s_mov_b32 s{d+1}, s{base+1}"); p(f"s_mov_b32 s{d+2}, {nbytes}"); p(f"s_mov_b32 s{d+3}, 0x20000")
def mksrd_off(p, d, base, soff, nbytes):
    p(f"s_add_u32 s{d}, s{base}, s{soff}"); p(f"s_addc_u32 s{d+1}, s{base+1}, 0"); p(f"s_mov_b32 s{d+2}, {nbytes}"); p(f"s_mov_b32 s{d+3}, 0x20000")

def wait_tags(p, lab, loads, regs, execmask=None, slp=None):
    p(f"s_mov_b32 s{t3}, {SPIN}")
    if execmask: p(f"s_mov_b64 exec, {execmask}")
    p.label(f"{lab}_loop")
    for l in loads: p(l)
    p("s_waitcnt vmcnt(0)")
    p(f"v_cmp_ne_u32 vcc, s{sTAG}, v{regs[0]}")
    for r in regs[1:]:
        p(f"v_cmp_ne_u32 s[2:3], s{sTAG}, v{r}") if False else None
    for r in regs[1:]:
        p(f"v_cmp_ne_u32 s[92:93], s{sTAG}, v{r}") if False else None
    for r in regs[1:]:
        p(f"s_mov_b64 s[{t0}:{t1}], vcc")
        p(f"v_cmp_ne_u32 vcc, s{sTAG}, v{r}")
        p(f"s_or_b64 vcc, vcc, s[{t0}:{t1}]")
    p(f"s_sub_u32 s{t3}, s{t3}, 1")
    p(f"s_cbranch_scc1 {lab}_out")
    p(f"s_cbranch_vccz {lab}_out")
    p(f"s_sleep {slp or SLP}")
    p(f"s_branch {lab}_loop")
    p.label(f"{lab}_out")
    if execmask: p("s_mov_b64 exec, -1")
def w0_only(p, lab):
    p(f"s_cmp_lg_u32 s{sW}, 0"); p(f"s_cbranch_scc1 {lab}")
def set_flag(p, lab, instr, execmask):
    p("s_waitcnt vmcnt(0)")
    p("s_barrier")
    w0_only(p, f"{lab}_sig")
    p(f"s_mov_b64 exec, {execmask}")
    p(instr)
    p("s_mov_b64 exec, -1")
    p.label(f"{lab}_sig")

def addr_regs(p):
    for s_ in range(4):
        p(f"v_add_u32 v5, {4*s_}, v4"); p("v_xor_b32 v5, v5, v3"); p("v_lshlrev_b32 v5, 4, v5")
        p(f"v_lshl_add_u32 v{KA+s_}, v3, 8, v5")
    p("v_lshrrev_b32 v6, 2, v3"); p("v_lshl_add_u32 v7, v4, 2, v6")
    p("v_and_b32 v36, 7, v7"); p("v_lshlrev_b32 v36, 1, v36"); p("v_bfe_u32 v37, v3, 1, 1")
    p("v_and_b32 v38, 1, v3"); p("v_lshlrev_b32 v38, 3, v38"); p("v_lshl_add_u32 v38, v7, 8, v38"); p(f"v_add_u32 v38, {LDS_V}, v38")
    for dt in range(8):
        p(f"v_add_u32 v5, {2*dt}, v37"); p("v_xor_b32 v5, v5, v36"); p(f"v_lshl_add_u32 v{VA+dt}, v5, 4, v38")
    p("v_lshl_add_u32 v7, v2, 3, v4")
    for i in range(2):
        p(f"v_add_u32 v5, {4*i}, v7"); p("v_and_b32 v5, 15, v5"); p("v_xor_b32 v5, v5, v3"); p("v_lshlrev_b32 v5, 4, v5")
        p(f"v_lshl_add_u32 v{DK+i}, v7, 8, v5")
        p(f"v_add_u32 v5, {4*i}, v4"); p("v_lshlrev_b32 v5, 1, v5"); p("v_xor_b32 v5, v5, v3"); p("v_lshlrev_b32 v5, 4, v5")
        p(f"v_lshl_add_u32 v{DV+i}, v7, 8, v5")
    p("v_lshl_add_u32 v7, v4, 3, v6"); p("v_and_b32 v36, 3, v3")
    for s_ in range(4):
        p(f"v_xor_b32 v5, {s_}, v6"); p("v_lshl_add_u32 v5, v5, 2, v36"); p("v_lshlrev_b32 v5, 4, v5")
        p(f"v_lshl_add_u32 v{WA+s_}, v7, 8, v5"); p(f"v_add_u32 v{WAH+s_}, 0x10000, v{WA+s_}")
    p(f"v_lshlrev_b32 v{MA}, 6, v4"); p(f"v_add_u32 v{MA}, {LDS_MQ}, v{MA}")
    for r in range(4): p(f"v_mov_b32 v{ONES+r}, 0x3f803f80")
    p("v_lshrrev_b32 v5, 3, v1"); p("v_and_b32 v6, 7, v1"); p("v_lshlrev_b32 v7, 1, v4"); p("v_xor_b32 v6, v6, v7"); p("v_lshlrev_b32 v6, 4, v6")
    p(f"v_lshl_add_u32 v{DWO}, v5, 10, v6")
    for i in range(1, 4): p(f"v_add_u32 v{DWO+i}, {7*1024*i}, v{DWO}")
    owner_regs(p, PFD, PFD+1, PFD+3)
    p(f"v_lshrrev_b32 v{PFD+1}, 1, v{PFD+1}")
    p("v_lshrrev_b32 v5, 1, v0"); p(f"v_mul_u32_u24 v5, 14336, v5"); p("v_and_b32 v6, 1, v0"); p(f"v_lshl_add_u32 v{PFD+2}, v6, 4, v5")

def cm(k): return (k // 2)*128 + (k % 2)*64
def owner_regs(p, VX, VM, VP):
    p("v_lshrrev_b32 v5, 5, v1"); p("v_bfe_u32 v6, v1, 3, 2"); p("v_and_b32 v7, 7, v1")
    p(f"v_lshlrev_b32 v{VP}, 10, v5"); p(f"v_lshl_add_u32 v{VP}, v6, 8, v{VP}"); p(f"v_lshl_add_u32 v{VP}, v7, 4, v{VP}")
    p("v_lshl_add_u32 v5, v5, 2, v6")
    p(f"v_lshlrev_b32 v{VM}, 4, v5"); p(f"v_lshl_add_u32 v{VM}, v2, 9, v{VM}")
    p(f"v_lshrrev_b32 v5, 1, v{VM}"); p(f"v_lshl_add_u32 v{VX}, v7, 10, v5")

def late_setup(p):
    p(f"s_lshl_b32 s{t0}, s{sH}, 19")
    mksrd_off(p, RK, 6, t0, 0x80000); mksrd_off(p, RV, 8, t0, 0x80000)
    p(f"s_bfe_u32 s{t1}, s2, 0x10002")
    p(f"s_lshl_b32 s{t0}, s{t1}, 21")
    mksrd_off(p, RWO, 12, t0, 2048*512*2)
    p(f"s_lshr_b32 s{sPW}, s2, 3"); p(f"s_lshl_b32 s{sPW}, s{sPW}, 16"); p(f"s_lshl_b32 s{t0}, s{sW}, 14"); p(f"s_add_u32 s{sPW}, s{sPW}, s{t0}")
    p(f"s_mul_i32 s{sPF}, s2, 7168")
    p(f"s_cmp_eq_u32 s{sW}, 0"); p(f"s_cselect_b32 s{RPF}, s18, s20"); p(f"s_cselect_b32 s{RPF+1}, s19, s21")
    p(f"s_cmp_eq_u32 s{sW}, 2"); p(f"s_cselect_b32 s{RPF}, s22, s{RPF}"); p(f"s_cselect_b32 s{RPF+1}, s23, s{RPF+1}")
    p(f"s_cmp_eq_u32 s{sW}, 3"); p(f"s_cselect_b32 s{RPF+2}, 0, {512*1792*2}"); p(f"s_mov_b32 s{RPF+3}, 0x20000")
    p(f"s_cmp_lt_u32 s2, {NFFN}"); p(f"s_cselect_b32 s{t0}, {512*1792*2}, 0")
    for d, b in ((RG, 18), (RU, 20)):
        p(f"s_mov_b32 s{d}, s{b}"); p(f"s_mov_b32 s{d+1}, s{b+1}"); p(f"s_mov_b32 s{d+2}, s{t0}"); p(f"s_mov_b32 s{d+3}, 0x20000")
    p("s_mov_b32 s20, s22"); p("s_mov_b32 s21, s23"); p(f"s_mov_b32 s22, s{t0}"); p("s_mov_b32 s23, 0x20000")
    mksrd(p, ROUT, 28, 2048*512*2); mksrd(p, RWR, 16, 1024)
    p(f"s_mov_b32 s{sK}, 0"); p(f"s_mov_b32 s{sV}, 0")
    p(f"s_lshl_b32 s{sWL}, s{sW}, 11")
    p(f"s_mov_b32 s{sKH}, s{t1}")
    p(f"s_and_b32 s{sRB}, s2, 3"); p(f"s_lshl_b32 s{sRB}, s{sRB}, 2"); p(f"s_lshr_b32 s{t0}, s2, 6"); p(f"s_add_u32 s{sRB}, s{sRB}, s{t0}")
    p(f"s_bfe_u32 s{sCB}, s2, 0x30003")
    p(f"s_lshl_b32 s{sW4}, s{sW}, 12")
    p(f"s_lshl_b32 s{sWO}, s{sW}, 15"); p(f"s_lshl_b32 s{t0}, s{sCB}, 7"); p(f"s_add_u32 s{sWO}, s{sWO}, s{t0}")
    p(f"s_lshl_b32 s{sXO}, s{sQB}, 4"); p(f"s_lshl_b32 s{t0}, s{sW}, 2"); p(f"s_add_u32 s{sXO}, s{sXO}, s{t0}")
    p(f"s_lshl_b32 s{sXO}, s{sXO}, 10")
    p(f"s_lshl_b32 s{sOF}, s{sH}, 19"); p(f"s_add_u32 s{sOF}, s{sOF}, s{sXO}"); p(f"s_add_u32 s{sOF}, s{sOF}, {WS_OF}")
    p(f"s_add_u32 s{sXO}, s{sXO}, {WS_XF}")
    p(f"s_lshl_b32 s{sO}, s{sKH}, 3"); p(f"s_add_u32 s{sO}, s{sO}, s{sCB}")
    p(f"s_lshl_b32 s{sSLOT}, s{sRB}, 4"); p(f"s_add_u32 s{sSLOT}, s{sSLOT}, s{sO}")
    p(f"s_lshl_b32 s{sROW}, s{sSLOT}, 13")
    p(f"s_and_b32 s{sFF}, s2, 7"); p(f"s_mul_i32 s{sFF}, s{sFF}, 14"); p(f"s_lshr_b32 s{t0}, s2, 3"); p(f"s_add_u32 s{sFF}, s{sFF}, s{t0}")
    p(f"s_lshl_b32 s{sG0}, s{sFF}, 5"); p(f"s_add_u32 s{sG1}, s{sG0}, 7168")
    p(f"s_lshl_b32 s{sD0}, s{sFF}, 14"); p(f"s_add_u32 s{sD0}, s{sD0}, s{sW4}")

def eload(p):
    p(f"buffer_load_dword v35, off, {R(RWS)}, 0 offset:{WS_EPOCH} sc1")
def mktag(p, n):
    p(f"s_waitcnt vmcnt({n})")
    p(f"v_readfirstlane_b32 s{sTAG}, v35")
    p(f"s_mul_i32 s{sTAG}, s{sTAG}, 0x9E3779B1")
    p(f"s_add_u32 s{sTAG}, s{sTAG}, 0x7F4A7C15")

def fused(a, name):
    kernel_begin(a, name)
    p = Prog()
    saved = {}
    p("s_cmp_ge_u32 s2, 256")
    p("s_cbranch_scc1 F_END")
    p("s_load_dwordx16 s[4:19], s[0:1], 0")
    p(f"s_load_dwordx8 s[20:27], s[0:1], {KA_WU}")
    p(f"s_load_dwordx2 s[28:29], s[0:1], {KA_OUT}")
    p(f"s_load_dwordx2 s[30:31], s[0:1], {KA_WS}")
    p("v_and_b32 v1, 63, v0")
    p("v_lshrrev_b32 v2, 6, v0")
    p("v_and_b32 v3, 15, v1")
    p(f"v_readfirstlane_b32 s{sW}, v2")
    p("v_lshrrev_b32 v4, 4, v1")
    p(f"s_and_b32 s{sH}, s2, 7"); p(f"s_lshl_b32 s{sH}, s{sH}, 2"); p(f"s_bfe_u32 s{t0}, s2, 0x20003"); p(f"s_add_u32 s{sH}, s{sH}, s{t0}")
    p(f"s_lshr_b32 s{sQB}, s2, 5")
    p(f"v_lshlrev_b32 v{XV}, 4, v1")
    p(f"s_cmp_eq_u32 s{sW}, 1"); p("s_cbranch_scc1 F_MOD")
    p(f"s_cmp_eq_u32 s{sW}, 3"); p("s_cbranch_scc1 F_WQ")
    X0, XF32 = 40, 56
    p("v_and_b32 v5, 3, v1"); p("v_lshrrev_b32 v6, 2, v1")
    p("v_lshlrev_b32 v7, 10, v5"); p("v_lshl_add_u32 v7, v6, 4, v7")
    p(f"s_lshl_b32 s{t0}, s{sQB}, 8"); p(f"s_lshl_b32 s{t1}, s{sH}, 3"); p(f"s_add_u32 s{t0}, s{t0}, s{t1}")
    p(f"s_lshl_b32 s{t1}, s{sW}, 1"); p(f"s_add_u32 s{t0}, s{t0}, s{t1}")
    p(f"s_lshl_b32 s{t1}, s{t0}, 10")
    p("v_lshrrev_b32 v39, 2, v6"); p("v_lshlrev_b32 v39, 17, v39"); p("v_and_b32 v6, 3, v6")
    p("v_lshl_add_u32 v39, v6, 6, v39"); p("v_lshl_add_u32 v39, v5, 4, v39")
    p("s_waitcnt lgkmcnt(0)")
    mksrd(p, RX, 4, 2048*512*2)
    for m in range(4): p(f"buffer_load_dwordx4 {vr(X0+4*m,4)}, v7, {R(RX)}, s{t1} offen offset:{m*256}")
    mksrd(p, RWS, 30, WS_SIZE)
    eload(p)
    p(f"s_lshr_b32 s{t2}, s{t0}, 4"); p(f"s_lshl_b32 s{t2}, s{t2}, 10"); p(f"s_and_b32 s{t0}, s{t0}, 15"); p(f"s_lshl_b32 s{t0}, s{t0}, 6")
    p(f"s_add_u32 s3, s{t2}, s{t0}"); p(f"s_add_u32 s3, s3, {WS_XF}")
    late_setup(p); addr_regs(p)
    p("; MARKL")
    p("s_waitcnt vmcnt(1)")
    p("; MARKM")
    for m in range(4): unpack8(p, X0+4*m, XF32+8*m)
    p(f"v_add_f32 v{X0}, v{XF32}, v{XF32+1}"); p(f"v_mul_f32 v{X0+1}, v{XF32}, v{XF32}")
    p(f"v_add_f32 v{X0+2}, v{XF32+2}, v{XF32+3}"); p(f"v_mul_f32 v{X0+3}, v{XF32+1}, v{XF32+1}")
    for e in range(4, 32): p(f"v_add_f32 v{X0+2*(e%2)}, v{X0+2*(e%2)}, v{XF32+e}")
    for e in range(2, 32): p(f"v_fmac_f32 v{X0+1+2*(e%2)}, v{XF32+e}, v{XF32+e}")
    p(f"v_add_f32 v{X0}, v{X0}, v{X0+2}"); p(f"v_add_f32 v{X0+1}, v{X0+1}, v{X0+3}")
    red_ror(p, [X0, X0+1], [X0+2, X0+3], ['row_ror:4', 'row_ror:8'])
    p(f"v_mul_f32 v{X0}, {f32(1/512)}, v{X0}"); p(f"v_mul_f32 v{X0+1}, {f32(1/512)}, v{X0+1}")
    p(f"v_fma_f32 v{X0+1}, -v{X0}, v{X0}, v{X0+1}"); p(f"v_max_f32 v{X0+1}, 0, v{X0+1}")
    rnd_bf16(p, X0); rnd_bf16(p, X0+1)
    p(f"v_add_f32 v{X0+1}, {f32(EPS)}, v{X0+1}"); rnd_bf16(p, X0+1)
    p(f"v_sqrt_f32 v{X0+1}, v{X0+1}"); p("s_nop 0"); rnd_bf16(p, X0+1)
    p(f"v_rcp_f32 v{X0+1}, v{X0+1}"); p("s_nop 0")
    p(f"v_mul_f32 v{X0}, -v{X0}, v{X0+1}") if False else p(f"v_mul_f32_e64 v{X0}, -v{X0}, v{X0+1}")
    for m in range(4):
        for e in range(8): p(f"v_fma_f32 v{XF32+8*m+e}, v{XF32+8*m+e}, v{X0+1}, v{X0}")
        for e in range(4): p(f"v_cvt_pk_f16_f32 v{88+4*m+e}, v{XF32+8*m+2*e}, v{XF32+8*m+2*e+1}")
        p(f"buffer_store_dwordx4 {vr(88+4*m,4)}, v39, {R(RWS)}, s3 offen sc1")
        if m < 3: p("s_add_u32 s3, s3, 524288")
    mktag(p, 4)
    p(f"s_lshl_b32 s{t0}, s{sQB}, 8"); p(f"s_add_u32 s{t2}, s{t0}, {WS_F0X}")
    p(f"s_lshl_b32 s{t0}, s{sH}, 3"); p(f"s_lshl_b32 s{t1}, s{sW}, 1"); p(f"s_add_u32 s{t0}, s{t0}, s{t1}")
    p(f"v_lshlrev_b32 v5, 11, v1"); p(f"v_add_u32 v5, s{t0}, v5"); p(f"v_mov_b32 v6, s{sTAG}")
    p("; MARKN")
    p("s_waitcnt vmcnt(0)")
    p("; MARKO")
    p("s_mov_b64 exec, 15")
    p(f"buffer_store_dword v6, v5, {R(RWS)}, s{t2} offen sc1")
    p("s_mov_b64 exec, -1")
    p("s_barrier")
    w0_only(p, "F_SYNC")
    p("v_lshlrev_b32 v5, 2, v1")
    p(f"s_and_b32 s3, s{sH}, 3"); p("s_lshl_b32 s3, s3, 11"); p(f"s_add_u32 s{t2}, s{t2}, s3")
    p(f"s_and_b32 s3, s2, 31"); p("s_lshl_b32 s3, s3, 8"); p(f"s_add_u32 s3, s3, {WS_F0M}")
    wait_tags(p, "F0", [f"buffer_load_dword v40, v5, {R(RWS)}, s{t2} offen sc1", f"buffer_load_dword v41, v5, {R(RWS)}, s3 offen sc1"], [40, 41])
    p("s_branch F_SYNC")
    p.label("F_MOD")
    p("v_and_b32 v5, 7, v1"); p("v_lshrrev_b32 v6, 3, v1")
    p(f"s_mov_b32 s{t0}, {16*6144}"); p(f"v_mul_lo_u32 v7, v6, s{t0}"); p("v_lshl_add_u32 v7, v5, 4, v7")
    p("v_lshlrev_b32 v39, 5, v5"); p("v_lshlrev_b32 v6, 5, v6")
    p(f"s_sub_u32 s{t0}, s2, 64"); p(f"s_and_b32 s{t1}, s{t0}, 31"); p(f"s_add_u32 s{t1}, s{t1}, 16"); p(f"s_lshr_b32 s{t0}, s{t0}, 5")
    p(f"s_and_b32 s{t2}, s2, 15"); p(f"s_lshr_b32 s{t3}, s2, 4")
    p("s_cmp_lt_u32 s2, 64"); p(f"s_cselect_b32 s{t1}, s{t2}, s{t1}"); p(f"s_cselect_b32 s{t0}, s{t3}, s{t0}")
    p("s_cmp_lt_u32 s2, 192"); p(f"s_cselect_b32 s{t3}, {512*3072*2}, 0")
    p("s_waitcnt lgkmcnt(0)")
    mksrd(p, RA, 24, 1024); mksrd(p, RB, 26, f"s{t3}")
    p(f"s_lshl_b32 s{t2}, s{t0}, 8")
    for k in range(2): p(f"buffer_load_dwordx4 {vr(40+4*k,4)}, v6, {R(RA)}, s{t2} offen offset:{16*k}")
    p(f"s_mul_i32 s{t2}, s{t0}, {128*6144}"); p(f"s_lshl_b32 s{t3}, s{t1}, 7"); p(f"s_add_u32 s{t2}, s{t2}, s{t3}")
    for i in range(16):
        p(f"buffer_load_dwordx4 {vr(104+4*i,4)}, v7, {R(RB)}, s{t2} offen")
        if i < 15: p(f"s_add_u32 s{t2}, s{t2}, 6144")
    mksrd(p, RWS, 30, WS_SIZE); mksrd(p, RX, 4, 2048*512*2)
    eload(p)
    p(f"s_mul_i32 s3, s{t0}, 12288"); p(f"s_lshl_b32 s{t1}, s{t1}, 8"); p(f"s_add_u32 s3, s3, s{t1}"); p(f"s_add_u32 s3, s3, {WS_MP}")
    late_setup(p)
    p("s_waitcnt vmcnt(17)")
    unpack8(p, 40, 56); unpack8(p, 44, 64)
    for e in range(16): p(f"v_mul_f32 v{72+e}, {f32(-LOG2E)}, v{56+e}")
    for e in range(16): p(f"v_exp_f32 v{72+e}, v{72+e}")
    for e in range(16): p(f"v_add_f32 v{72+e}, 1.0, v{72+e}")
    for e in range(16): p(f"v_rcp_f32 v{72+e}, v{72+e}")
    for e in range(16): p(f"v_mul_f32 v{56+e}, v{56+e}, v{72+e}")
    rnd_pairs(p, list(range(56, 72)))
    for i in range(16):
        p(f"s_waitcnt vmcnt({16-i})")
        unpack8(p, 104+4*i, 72)
        for e in range(8):
            p(f"v_mul_f32 v{40+e}, v{56+i}, v{72+e}" if i == 0 else f"v_fmac_f32 v{40+e}, v{56+i}, v{72+e}")
    p("; MARKP")
    red_ror(p, list(range(40, 48)), list(range(48, 56)), ['row_ror:8'])
    p("s_cmp_lt_u32 s2, 192"); p("s_cbranch_scc0 F_MOD2")
    p("s_mov_b64 exec, 0xff00")
    for k in range(4): p(f"v_mov_b32 v{40+k}, v{44+k}")
    p("v_add_u32 v39, 16, v39")
    p("s_mov_b64 exec, 0xffff")
    p(f"buffer_store_dwordx4 v[40:43], v39, {R(RWS)}, s3 offen sc1")
    p("s_mov_b64 exec, -1")
    p.label("F_MOD2")
    mktag(p, 0)
    p("v_lshlrev_b32 v5, 8, v1"); p(f"v_mov_b32 v6, s{sTAG}")
    p(f"s_lshl_b32 s{t0}, s2, 2"); p(f"s_add_u32 s{t1}, s{t0}, {WS_F0R - 256}"); p(f"s_add_u32 s{t0}, s{t0}, {WS_F0M}")
    p("s_cmp_lt_u32 s2, 64"); p(f"s_cselect_b32 s{t0}, s{t0}, s{t1}"); p(f"s_cselect_b32 s{t2}, -1, 1"); p(f"s_mov_b32 s{t3}, 0")
    p("s_waitcnt vmcnt(0)")
    p("; MARKQ")
    p(f"s_mov_b64 exec, s[{t2}:{t3}]")
    p(f"buffer_store_dword v6, v5, {R(RWS)}, s{t0} offen sc1")
    p("s_mov_b64 exec, -1")
    addr_regs(p)
    p("s_barrier")
    p("s_branch F_SYNC")
    p.label("F_WQ")
    p("v_lshlrev_b32 v5, 2, v4"); p("v_xor_b32 v5, v3, v5"); p("v_lshlrev_b32 v5, 4, v5"); p(f"v_lshl_add_u32 v{DW}, v4, 13, v5")
    p(f"s_lshl_b32 s{t0}, s{sH}, 8")
    p("s_waitcnt lgkmcnt(0)")
    mksrd(p, RWS, 30, WS_SIZE)
    if 'tlb' in OPT:
        p("v_lshlrev_b32 v5, 19, v1")
        p(f"buffer_load_dword v104, v5, {R(RWS)}, 0 offen")
        p("v_lshlrev_b32 v5, 16, v1")
        p(f"buffer_load_dword v105, v5, {R(RWS)}, 0 offen offset:128")
    eload(p)
    mksrd(p, RWQ, 10, 512*4096*2)
    p(f"s_lshl_b32 s{t1}, s{sQB}, 19"); p(f"s_add_u32 s{t1}, s{t1}, s{t0}")
    for i in range(16 if 'nopre' not in OPT else 0):
        p(f"buffer_load_dwordx4 {vr(40+4*i,4)}, v{DW}, {R(RWQ)}, s{t1} offen")
        if i < 15: p(f"s_add_u32 s{t1}, s{t1}, 32768")
    p(f"s_mov_b32 s3, s{t0}")
    mksrd(p, RX, 4, 2048*512*2)
    late_setup(p)
    if 'tlb' in OPT:
        p("v_lshlrev_b32 v5, 13, v1")
        p(f"buffer_load_dword v106, v5, {R(RK)}, 0 offen"); p(f"buffer_load_dword v107, v5, {R(RV)}, 0 offen")
        p("v_lshlrev_b32 v5, 15, v1")
        p(f"buffer_load_dword v108, v5, {R(RWO)}, 0 offen")
        mksrd(p, RA, 28, 2048*512*2)
        p(f"buffer_load_dword v109, v5, {R(RA)}, 0 offen")
    if 'nopre' not in OPT: addr_regs(p); mktag(p, 0)
    p("; MARKT")
    for c in range(8):
        for i in range(16):
            p(f"s_mov_b32 m0, {WQ_REGION[c] + i*1024}")
            if c + i: p(f"s_add_u32 s3, s3, 32768")
            else: p("s_nop 0")
            p(f"buffer_load_dwordx4 v{DW}, {R(RWQ)}, s3 offen lds")
            if i % 4 == 3 and WQTH: p(f"s_waitcnt vmcnt({WQTH})")
    p("; MARKR")
    if 'nopre' in OPT: addr_regs(p); mktag(p, 0)
    p("s_waitcnt vmcnt(0)"); p("s_barrier")
    p.label("F_SYNC")
    p(Call(lambda st: (st['vq'].clear(), st['lq'].clear())))
    p("s_barrier")
    p("; MARKA")
    p(f"v_lshrrev_b32 v5, 2, v3"); p("v_and_b32 v6, 3, v3"); p(f"v_lshlrev_b32 v{XX}, 8, v5")
    p(f"v_lshl_add_u32 v{XX}, v4, 6, v{XX}"); p(f"v_lshl_add_u32 v{XX}, v6, 4, v{XX}")
    p("v_lshlrev_b32 v5, 3, v0")
    p(f"s_mov_b32 s{t0}, {WS_MP}")
    for kq in range(4):
        p(f"buffer_load_dwordx2 {vr(200+2*kq,2)}, v5, {R(RWS)}, s{t0} offen sc1", v='MP')
        p(f"buffer_load_dwordx2 {vr(208+2*kq,2)}, v5, {R(RWS)}, s{t0} offen offset:2048 sc1", v='MP')
        if kq < 3: p(f"s_add_u32 s{t0}, s{t0}, 12288")
    p(f"v_lshlrev_b32 v{FRV}, 3, v1"); p(f"s_mov_b32 s{t2}, {WS_F0R}")
    p(f"buffer_load_dwordx2 v[{MX}:{MX+1}], v{FRV}, {R(RWS)}, s{t2} offen sc1", v='FR')
    def x_load(ks, g):
        r = XR + (ks % 8)*16 + g*4
        return I(f"buffer_load_dwordx4 {vr(r,4)}, v{XX}, {R(RWS)}, s{sXO} offen offset:{g*1024} sc1", v=('X', ks))
    x_bump = f"s_add_u32 s{sXO}, s{sXO}, 131072"
    for ks in range(XLA):
        for g in range(4): p(x_load(ks, g))
        p(x_bump)
    p("v_lshrrev_b32 v5, 2, v0"); p("v_lshlrev_b32 v5, 6, v5"); p("v_and_b32 v6, 3, v0"); p("v_lshl_add_u32 v5, v6, 3, v5")
    p(f"v_add_u32 v5, {LDS_MQ}, v5")
    p(WV({'MP'}))
    for b in (200, 208):
        for e in range(2):
            p(f"v_add_f32 v{b+e}, v{b+e}, v{b+2+e}"); p(f"v_add_f32 v{b+4+e}, v{b+4+e}, v{b+6+e}")
        for e in range(2): p(f"v_add_f32 v{b+e}, v{b+e}, v{b+4+e}")
    rnd_pairs(p, [200, 201, 208, 209])
    for e in range(2): p(f"v_add_f32 v{208+e}, 1.0, v{208+e}")
    rnd_pairs(p, [208, 209])
    for r in (200, 201, 208, 209): p(f"v_mul_f32 v{r}, {f32(CS)}, v{r}")
    p("ds_write_b64 v5, v[208:209]"); p("ds_write_b64 v5, v[200:201] offset:32")
    p("s_waitcnt lgkmcnt(0)")
    p("s_barrier")
    def wfrag_reads(fs, j, ks):
        c, kh = ks // 2, ks % 2
        s_, par = j // 2, j % 2
        reg = WQ_REGION[c]
        av = (WA if reg < 65536 else WAH) + s_
        o = (reg % 65536) + kh*8192 + par*8
        f = FSET[fs] + 4*j
        return [I(f"ds_read_b64_tr_b16 a[{f}:{f+1}], v{av} offset:{o}", l=('F', ks, j)),
                I(f"ds_read_b64_tr_b16 a[{f+2}:{f+3}], v{av} offset:{o+1024}", l=('F', ks, j))]
    def mq_reads(ks):
        b = MQ[ks % 2]
        return [I(f"ds_read_b128 {vr(b+4*i,4)}, v{MA} offset:{ks*256 + i*16}", l=('MQ', ks)) for i in range(4)]
    def mod_stream(ks):
        st = []
        b = MQ[ks % 2]
        for g in range(4):
            for r in range(4):
                x = XR + (ks % 8)*16 + g*4 + r
                tt = TMP + ((g*4 + r) % 4)*2
                st.append((f"v_fma_mix_f32 v{tt}, v{x}, v{b+2*r}, v{b+8+2*r} op_sel_hi:[1,0,0]", 4))
                st.append((f"v_fma_mix_f32 v{tt+1}, v{x}, v{b+2*r+1}, v{b+8+2*r+1} op_sel:[1,0,0] op_sel_hi:[1,0,0]", 4))
                st.append((f"v_cvt_pk_bf16_f32 v{HB[ks%2]+g*4+r}, v{tt}, v{tt+1}", 4))
        return st
    p(mq_reads(0)); p(mq_reads(1))
    for j in range(8): p(wfrag_reads(0, j, 0))
    p(WV({('X', 0)}))
    p(WL({('MQ', 0)}))
    for t, _ in mod_stream(0): p(t)
    p("; MARKD")
    kv_after = {3: [('K', 0), ('K', 1)], 5: [('K', 2), ('K', 3)], 7: [('V', 0), ('V', 1)], 9: [('K', 4), ('K', 5)],
                11: [('V', 2), ('V', 3)], 13: [('K', 6)]}
    for ks in range(16):
        fs = ks % 2
        mf = []
        for j in range(8):
            f = FSET[fs] + 4*j
            for g in range(4):
                o = (j*4 + g)*4
                mf.append((f"{MFMA} {ar(o,4)}, a[{f}:{f+3}], {vr(HB[ks%2]+g*4,4)}, {'0' if ks == 0 else ar(o,4)}", (j, g)))
        pre = []
        if ks < 15: pre += [WV({('X', ks+1)}), WL({('MQ', ks+1)})]
        if ks in kv_after: pre.append("s_barrier")
        pf = (lambda j, ks=ks: wfrag_reads(1 - ks % 2, j, ks+1)) if ks < 15 else None
        dm = sum([dma_unit(k, u) for (k, u) in kv_after.get(ks, [])], [])
        pw, mfl, gaps, pos = block([(mf, ('F', ks), pf)], dmas=dm)
        extra = []
        if ks + 2 < 16: extra += [('L', r) for r in mq_reads(ks+2)]
        if ks + XLA < 16: extra += [('V', x_load(ks+XLA, g)) for g in range(4)]
        cand = [pos[(0, j, 3)] for j in range(8)] + [pos[(0, j, 1)] for j in range(8)] + [pos[(0, j, 2)] for j in range(8)]
        cand = [i for i in cand if gaps[i].used == 0 and not gaps[i].salu]
        assert len(extra) <= len(cand)
        for (kind, op), i in zip(extra, cand):
            gaps[i].mem.append(op); gaps[i].used += 4 if kind == 'L' else 8
        if ks < 15: fill(gaps, mod_stream(ks+1))
        if ks + XLA < 16: gaps[-1].valu.append(x_bump)
        p(pre); p(pw)
        emit_stream(p, mfl, gaps)
    p(WV({('K', 0), ('K', 1), ('K', 2), ('K', 3), ('V', 0)}))
    p("s_barrier")
    p("; MARKB")
    for j in range(8): p(kfrag_reads(0, j, 0))
    dma_plain(p, dma_unit('V', 4))
    p(f"v_cmp_ne_u32 vcc, s{sTAG}, v{MX}"); p(f"s_mov_b64 s[{t0}:{t1}], vcc"); p(f"v_cmp_ne_u32 vcc, s{sTAG}, v{MX+1}")
    p(f"s_or_b64 vcc, vcc, s[{t0}:{t1}]")
    p("s_cbranch_vccz F0R_done")
    p(Call(lambda st: saved.__setitem__('vq', list(st['vq']))))
    wait_tags(p, "F0R", [f"buffer_load_dwordx2 v[{MX}:{MX+1}], v{FRV}, {R(RWS)}, s{t2} offen sc1"], [MX, MX+1])
    p.label("F0R_done")
    p(Call(lambda st: st['vq'].__setitem__(slice(None), saved['vq'])))
    MP2 = S[1]
    p("v_lshlrev_b32 v5, 5, v0")
    p(f"s_mov_b32 s{t0}, {WS_MP + 4096}")
    for kq in range(4):
        for k in range(2): p(f"buffer_load_dwordx4 {vr(MP2+8*kq+4*k,4)}, v5, {R(RWS)}, s{t0} offen offset:{16*k} sc1", v=('MP2', 0))
        if kq < 3: p(f"s_add_u32 s{t0}, s{t0}, 12288")
    p(f"v_add_u32 v5, {LDS_MV}, v5")
    p(f"s_cmp_eq_u32 s{sW}, 2"); p(f"s_cselect_b32 s{t2}, 1.0, 0")
    for g in range(4):
        for s_ in range(4):
            for h in range(2):
                o = ((2*s_ + h)*4 + g)*4
                for r in range(4): p(f"v_accvgpr_read_b32 v{TMP + (h*4 + r)}, a{o+r}")
            for k in range(4): p(f"v_cvt_pk_bf16_f32 v{Q+(g*4+s_)*4+k}, v{TMP+2*k}, v{TMP+2*k+1}")
    p.nop(2)
    pw, mfl, gaps, pos = block([(qk_half(0, 0, czero=True), ('K', 0), lambda j: kfrag_reads(1, j, 1))])
    p(pw); emit_stream(p, mfl, gaps)
    p.nop(8)
    tile_max(p)
    for g in range(4):
        for r in range(4): p(f"v_sub_f32 v{NEG+g*4+r}, 0, v{TMP+g}")
        for r in range(8): p(f"v_sub_f32 v{S[0]+g*8+r}, v{S[0]+g*8+r}, v{TMP+g}")
    p(WV({('MP2', 0)}))
    for e in range(8):
        p(f"v_add_f32 v{MP2+e}, v{MP2+e}, v{MP2+8+e}"); p(f"v_add_f32 v{MP2+16+e}, v{MP2+16+e}, v{MP2+24+e}")
    for e in range(8): p(f"v_add_f32 v{MP2+e}, v{MP2+e}, v{MP2+16+e}")
    rnd_pairs(p, [MP2+e for e in range(8)])
    for e in range(8): p(f"v_add_f32 v{MP2+e}, s{t2}, v{MP2+e}")
    rnd_pairs(p, [MP2+e for e in range(8)])
    p(f"ds_write_b128 v5, {vr(MP2,4)}", l=('MV', 0, 0)); p(f"ds_write_b128 v5, {vr(MP2+4,4)} offset:16", l=('MV', 0, 0))
    p(WL({('MV', 0, 0)}))

    def period(u, tail=(), vm=12):
        if u == 0:
            halves = [(qk_half(1, 1), ('K', 1), lambda j: kfrag_reads(0, j, 2))]
        elif u <= 62:
            halves = [(qk_half(0, (u+1) % 2), ('K', u+1), lambda j: vfrag_reads(1, j, u-1)),
                      (pv_half(1, (u-1) % 2, czero=(u == 1)), ('V', u-1),
                       (lambda j: kfrag_reads(0, j, u+2)) if u <= 61 else (lambda j: vfrag_reads(0, j, 62)))]
        elif u == 63:
            halves = [(pv_half(0, 0), ('V', 62), lambda j: vfrag_reads(1, j, 63))]
        else:
            halves = [(pv_half(1, 1), ('V', 63), None)]
        if u % 2 == 0: units = [('K', x) for x in (u+7, u+8) if u <= 56]
        else: units = [('V', x) for x in (u+4, u+5) if x <= 63]
        dm = sum([dma_unit(k, x) for (k, x) in units], [])
        st = {58: 0, 60: 1, 61: 2, 62: 3, 63: 4}.get(u)
        if st is not None: dm += wo_stage(st)
        tl = list(tail)
        if u % 2 == 1 and u <= 61:
            if vm == 'A': w = WV({('K', 63), ('K', 64), ('V', 60)})
            elif vm == 'B': w = WV({('V', 61), ('V', 62), ('V', 63)})
            else: w = f"s_waitcnt vmcnt({vm})"
            tl = [w, "s_barrier"] + tl
        pw, mfl, gaps, pos = block(halves, dmas=dm)
        pf = []
        if u == 4: pf = [(f"buffer_load_dwordx4 {ar(aWG,4)}, v{XV}, {R(RPF)}, s{sPF} offen", f"s_add_u32 s{sPF}, s{sPF}, 1024")]
        if u in (0, 1, 6, 8): pf = [(f"buffer_load_dwordx4 {ar(aWG,4)}, v{XV}, {R(RWO)}, s{sPW} offen", f"s_add_u32 s{sPW}, s{sPW}, 1024")]
        if u == 58: pf = [(f"buffer_load_dwordx4 {ar(aWG+4*i,4)}, v{PFD+2}, {R(RG)}, s{(sG0, sG1)[i//2]} offen offset:{(i % 2)*3584}", None) for i in range(4)]
        if u == 59: pf = [(f"buffer_load_dwordx4 {ar(aWU+4*i,4)}, v{PFD+2}, {R(RU)}, s{(sG0, sG1)[i//2]} offen offset:{(i % 2)*3584}", None) for i in range(4)]
        if u == 60: pf = [(f"buffer_load_dwordx4 {ar(aWD+4*i,4)}, v{XV}, {R(RD)}, s{sD0} offen offset:{i*1024}", None) for i in range(4)]
        if u == 61: pf = [(f"buffer_load_dwordx2 {ar(aX+2*k,2)}, v{PFD}, {R(RX)}, s{sROW} offen offset:{cm(k)}", None) for k in range(4)]
        if u == 62: pf = [(f"buffer_load_dwordx2 {ar(aWR+2*k,2)}, v{PFD+1}, {R(RWR)}, 0 offen offset:{cm(k)}", None) for k in range(4)]
        hl = len(halves) - 1
        for (m, sa), hj in zip(pf, [(hl, 3), (hl, 7), (0, 3), (0, 7)]):
            i = pos[hj + (1,)]
            assert gaps[i].used == 0
            gaps[i].mem.append(I(m, v=('PF', 0))); gaps[i].used += 8
            if sa: gaps[i+1].salu.append(sa)
        if u <= 63: fill(gaps, sm_stream(u % 2, u % 2))
        gaps[-1].valu += tl
        p(pw); emit_stream(p, mfl, gaps)

    period(0)
    p(f"s_mov_b32 s{sCNT}, 0")
    period(1)
    p(Call(lambda st: saved.__setitem__('e', list(st['lq']))))
    p(".p2align 6")
    p.label("F_LOOP")
    for u in range(2, 10):
        if u == 9: period(u, tail=[f"s_add_u32 s{sCNT}, s{sCNT}, 1", f"s_cmp_lt_u32 s{sCNT}, 7", "s_cbranch_scc1 F_LOOP"])
        else: period(u)
    def loop_exit(st):
        ex = [(k, un - 8, j) for (k, un, j) in st['lq']]
        assert ex == saved['e'], (ex, saved['e'])
        st['lq'][:] = [(k, un + 48, j) for (k, un, j) in st['lq']]
        st['vq'][:] = [(k, un + 48) for (k, un) in st['vq']]
        assert ('K', 64) in st['vq'], st['vq']
    p(Call(loop_exit))
    period(58); period(59, vm='A'); period(60); period(61, vm='B'); period(62); period(63)
    p(f"s_lshr_b32 s{t2}, s{sRB}, 1"); p(f"s_lshl_b32 s{t2}, s{t2}, 1"); p(f"s_add_u32 s{t2}, s{t2}, s{sKH}"); p(f"s_lshl_b32 s{t2}, s{t2}, 7")
    p(f"s_add_u32 s{sPF}, s{t2}, {WS_FO}")
    p(f"v_lshlrev_b32 v{FRV}, 2, v3")
    p(f"buffer_load_dword v{MX}, v{FRV}, {R(RWS)}, s{sPF} offen sc1", v=('FOC', 0))
    pvm = pv_half(1, 1)
    ms = [t for t, jg in pvm if jg is None]; pvs = [t for t, jg in pvm if jg is not None]
    def epi_ops(s_, g, k):
        t = S[0] + (k % 4)*12
        ops = []
        for h in range(2):
            o = ((2*s_ + h)*4 + g)*4
            ops += [f"v_accvgpr_read_b32 v{t + h*4 + r}, a{o+r}" for r in range(4)]
        ops += [f"v_mul_f32 v{t+r}, v{t+r}, v{NEG+g}" for r in range(8)]
        ops += [f"v_cvt_pk_bf16_f32 v{t+8+r}, v{t+2*r}, v{t+2*r+1}" for r in range(4)]
        ops.append(f"buffer_store_dwordx4 {vr(t+8,4)}, v{XV}, {R(RWS)}, s{sOF} offen offset:{g*1024} sc1")
        if g == 3 and s_ < 3: ops.append(f"s_add_u32 s{sOF}, s{sOF}, 131072")
        return ops
    for t in ms: p(t)
    p(WL({('V', 63, j) for j in range(4)}))
    chk = [f"v_mov_b32 v{TMP}, {f32(2.0**40 if 'slow' not in OPT else -1.0)}", f"s_mov_b64 s[{t0}:{t1}], 0"]
    for g in range(4): chk += [f"v_rcp_f32 v{NEG+g}, v{LS+g*4}", f"v_cmp_nle_f32 vcc, v{LS+g*4}, v{TMP}", f"s_or_b64 s[{t0}:{t1}], s[{t0}:{t1}], vcc"]
    stream = sum([epi_ops(s_, g, s_*4+g) for s_ in range(4) for g in range(4)], [])
    si = 0
    for i, t in enumerate(pvs):
        if i == 16: p(WL({('V', 63, j) for j in range(4, 8)}))
        p(t)
        if i == 7:
            for x in chk: p(x)
        if i >= 15:
            lim = 85 if i < 23 else 170
            for _ in range(4):
                if si < lim: p(stream[si]); si += 1
    while si < 170: p(stream[si]); si += 1
    p("; MARKC")
    for x in stream[si:]: p(x)
    p.label("F_PUB")
    p(f"s_cmp_lg_u64 s[{t0}:{t1}], 0"); p(f"s_cselect_b32 s{t2}, 1, 0")
    p(WV({('FOC', 0)}))
    p(f"v_cmp_ne_u32 vcc, s{sTAG}, v{MX}")
    p("s_cmp_lg_u64 vcc, 0"); p(f"s_cselect_b32 s{t3}, 2, 0"); p(f"s_or_b32 s{t2}, s{t2}, s{t3}")
    p(f"v_mov_b32 v{TMP+1}, s{t2}")
    p(f"v_lshlrev_b32 v{TMP+2}, 2, v2"); p(f"v_add_u32 v{TMP+2}, {LDS_VOTE}, v{TMP+2}")
    p(f"ds_write_b32 v{TMP+2}, v{TMP+1}")
    p(f"v_mov_b32 v{TMP+2}, {LDS_VOTE}")
    p(f"s_lshl_b32 s{t0}, s{sQB}, 1"); p(f"s_lshr_b32 s{t1}, s{sH}, 4"); p(f"s_add_u32 s{t0}, s{t0}, s{t1}"); p(f"s_lshl_b32 s{t0}, s{t0}, 7")
    p(f"s_and_b32 s{t1}, s{sH}, 15"); p(f"s_lshl_b32 s{t1}, s{t1}, 2"); p(f"s_add_u32 s{t0}, s{t0}, s{t1}"); p(f"s_add_u32 s{t0}, s{t0}, {WS_FO}")
    p(f"v_mov_b32 v5, 0"); p(f"v_mov_b32 v6, s{sTAG}")
    tail_setup(p)
    p("s_waitcnt vmcnt(0) lgkmcnt(0)")
    p("s_barrier")
    p(f"ds_read_b128 {vr(TMP+4,4)}, v{TMP+2}")
    p("s_waitcnt lgkmcnt(0)")
    p(f"v_or_b32 v{TMP+4}, v{TMP+4}, v{TMP+5}")
    p(f"v_or3_b32 v{TMP+4}, v{TMP+4}, v{TMP+6}, v{TMP+7}")
    p("s_nop 0")
    p(f"v_readfirstlane_b32 s{t2}, v{TMP+4}")
    p(f"s_bitcmp1_b32 s{t2}, 0")
    p("s_cbranch_scc1 F_SLOW")
    w0_only(p, "FO_sig")
    p("s_mov_b64 exec, 1")
    p(f"buffer_store_dword v6, v5, {R(RWS)}, s{t0} offen sc1")
    p("s_mov_b64 exec, -1")
    p.label("FO_sig")
    p("; MARKF")
    p(f"s_bitcmp1_b32 s{t2}, 1")
    p("s_cbranch_scc0 FO_go")
    w0_only(p, "FO_done")
    wait_tags(p, "FOW", [f"buffer_load_dword v{MX}, v{FRV}, {R(RWS)}, s{sPF} offen sc1"], [MX])
    p.label("FO_done")
    p("s_barrier")
    p.label("FO_go")
    p(Call(lambda st: (st['vq'].clear(), st['lq'].clear())))
    tail(p)
    p.label("F_END")
    p("s_endpgm")
    p.label("F_SLOW")
    AL = NEG
    for r in range(128): p(f"v_accvgpr_write_b32 a{r}, 0")
    for r in range(16): p(f"v_mov_b32 v{LS+r}, 0")
    for g in range(4): p(f"v_mov_b32 v{MX+g}, 0xff800000")
    p(f"s_mov_b32 s{sK}, 0"); p(f"s_mov_b32 s{sV}, 0"); p(f"s_mov_b32 s{sCNT}, 0")
    p.label("F_SLOOP")
    p("s_waitcnt vmcnt(0) lgkmcnt(0)")
    p("s_barrier")
    dma_plain(p, dma_unit('K', 7)); dma_plain(p, dma_unit('V', 4))
    p("s_waitcnt vmcnt(0)")
    p("s_barrier")
    for j in range(8): p(kfrag_reads(0, j, 7))
    p("s_waitcnt lgkmcnt(0)")
    for j in range(8):
        p(vfrag_reads(1, j, 4))
        if j == 5: p("s_waitcnt lgkmcnt(0)")
    for t, _ in qk_half(0, 0, czero=True): p(t)
    p.nop(8)
    tile_max(p, extra=MX)
    for g in range(4):
        p(f"v_sub_f32 v{AL+g}, v{MX+g}, v{TMP+g}")
        p(f"v_mov_b32 v{MX+g}, v{TMP+g}")
    for g in range(4): p(f"v_exp_f32 v{AL+g}, v{AL+g}")
    for i in range(32): p(f"v_sub_f32 v{S[0]+i}, v{S[0]+i}, v{MX+i//8}")
    for i in range(32): p(f"v_exp_f32 v{S[0]+i}, v{S[0]+i}")
    p("s_nop 0")
    for i in range(16): p(f"v_cvt_pk_bf16_f32 v{P[0]+i}, v{S[0]+2*i}, v{S[0]+2*i+1}")
    for g in range(4):
        for r in range(4): p(f"v_mul_f32 v{LS+g*4+r}, v{LS+g*4+r}, v{AL+g}")
    for j in range(8):
        for g in range(4):
            o = (j*4 + g)*4
            for r in range(4): p(f"v_accvgpr_read_b32 v{TMP+r}, a{o+r}")
            for r in range(4): p(f"v_mul_f32 v{TMP+r}, v{TMP+r}, v{AL+g}")
            for r in range(4): p(f"v_accvgpr_write_b32 a{o+r}, v{TMP+r}")
    p("s_waitcnt lgkmcnt(0)")
    p.nop(2)
    for t, _ in pv_half(1, 0): p(t)
    p.nop(8)
    p(f"s_add_u32 s{sCNT}, s{sCNT}, 1"); p(f"s_cmp_lt_u32 s{sCNT}, 64"); p("s_cbranch_scc1 F_SLOOP")
    for g in range(4): p(f"v_rcp_f32 v{NEG+g}, v{LS+g*4}")
    p(f"s_sub_u32 s{sOF}, s{sOF}, {3*131072}")
    for x in stream: p(x)
    p(f"s_mov_b64 s[{t0}:{t1}], 0")
    p(f"v_mov_b32 v{MX}, s{sTAG}"); p(f"v_not_b32 v{MX}, v{MX}")
    p("s_barrier")
    p("s_branch F_PUB")
    p.resolve(a)
    return kernel_desc(name, 512, 92, 256)

from ftail import tail, tail_setup
```

```python
import sys, os
sys.path.insert(0, os.path.dirname(os.path.abspath(__file__)))
from asmlib import *
from common import *
import k0, k2, k3, k456, kt

WS_STAMP = 0x2000000
def add_stamps(text, names):
    out = []; cur = None; idx = -1
    for line in text.split('\n'):
        st = line.strip()
        if st.endswith(':') and st[:-1] in names:
            if cur is not None: out += stamp_tail(cur, idx)
            cur = st[:-1]; idx = names.index(cur)
            out.append(line); out.append('    s_memrealtime s[96:97]'); out.append('    s_mov_b32 s95, s2'); out.append('    s_mov_b32 s94, 0'); out.append('    s_mov_b32 s93, 0'); out.append('    s_load_dwordx2 s[98:99], s[0:1], 112'); continue
        for x in sys.argv:
            if x.startswith('marks='):
                st = st.replace('MARK' + x[6], 'MARK1').replace('MARK' + x[7], 'MARK2')
        if st in ('; MARK1', '; MARK2'):
            out += ['    s_memtime s[100:101]' if 'cyc' in sys.argv else '    s_memrealtime s[100:101]', '    s_waitcnt lgkmcnt(0)', f"    s_mov_b32 s{94 if st.endswith('1') else 93}, s100"]; continue
        if st == 's_endpgm' and cur is not None:
            out.append(f'    s_branch STAMP_{cur}'); continue
        if st.startswith('.globl') and cur is not None:
            out += stamp_tail(cur, idx); cur = None
        out.append(line)
    if cur is not None: out += stamp_tail(cur, idx)
    return '\n'.join(out) + '\n'
def stamp_tail(cur, idx):
    t = f'''STAMP_{cur}:
    s_waitcnt vmcnt(0) lgkmcnt(0)
    s_memrealtime s[100:101]
    s_mov_b64 exec, 1
    s_add_u32 s88, s98, {WS_STAMP + idx*0x10000}
    s_addc_u32 s89, s99, 0
    s_mov_b32 s90, 0x10000
    s_mov_b32 s91, 0x20000
    v_lshrrev_b32 v1, 6, v0
    v_lshlrev_b32 v1, 4, v1
    s_lshl_b32 s95, s95, 7
    s_waitcnt lgkmcnt(0)
    v_mov_b32 v4, s96
    v_mov_b32 v5, s100
    v_mov_b32 v6, s94
    v_mov_b32 v7, s93
    buffer_store_dwordx4 v[4:7], v1, s[88:91], s95 offen
    s_endpgm'''
    return t.split('\n')

def build(force_slow=False, stamps=False):
    ref = open('cdna_kernels/' + NAME + '.s.ref').read().split('\n')
    head = [l for l in ref if l.startswith(';') and '@launch' not in l and 'Override launch' not in l and 'grid=ceil' not in l]
    launches = [('k0_kernel', k0.K0_GRID, 512, k0.K0_LDS), ('k2_kernel', 256, 256, k2.K2_LDS), ('kt_kernel', 256, 256, kt.KT_LDS)]
    allk = list(launches)
    for x in sys.argv:
        if x.startswith('list='):
            launches = [[l for l in allk if l[0].startswith(k)][0] for k in x[5:].split(',')]
    for n, g, b, l in launches:
        head.append(f"; @launch kernel={n} grid=({g},1,1) block=({b},1,1) lds={l}")
    a = Asm()
    a('.amdgcn_target "amdgcn-amd-amdhsa--gfx950"')
    a('.text')
    d = [k0.k0(a), k2.k2(a, force_slow=force_slow), kt.kt(a)]
    body = a.text(); desc = ''.join(d)
    if stamps:
        import re
        body = add_stamps(body, [l[0] for l in allk])
        desc = re.sub(r'next_free_sgpr \d+', 'next_free_sgpr 102', desc)
    return '\n'.join(head) + '\n' + body + '.section .rodata,"a"\n' + desc

if __name__ == '__main__':
    out = sys.argv[1] if len(sys.argv) > 1 else 'cdna_kernels/' + NAME + '.s'
    open(out, 'w').write(build(force_slow='slow' in sys.argv[2:], stamps='stamps' in sys.argv[2:]))
    print('wrote', out, os.path.getsize(out))
```

```python
from asmlib import *
from common import *

def rnd_bf16(a, r):
    a(f"v_cvt_pk_bf16_f32 v{r}, v{r}, v{r}")
    a(f"v_and_b32 v{r}, 0xffff0000, v{r}")

def unpack8(a, src, dst):
    for i in range(4):
        a(f"v_lshlrev_b32 v{dst+2*i}, 16, v{src+i}")
        a(f"v_and_b32 v{dst+2*i+1}, 0xffff0000, v{src+i}")

def rnd_pairs(a, regs):
    for i in range(0, len(regs), 2):
        a(f"v_cvt_pk_bf16_f32 v{regs[i]}, v{regs[i]}, v{regs[i+1]}")
    for i in range(0, len(regs), 2):
        a(f"v_and_b32 v{regs[i+1]}, 0xffff0000, v{regs[i]}")
        a(f"v_lshlrev_b32 v{regs[i]}, 16, v{regs[i]}")

K0_NLN, K0_NMOD = 128, 48
K0_GRID = K0_NLN + K0_NMOD
K0_LDS = 24576

def k0(a, name='k0_kernel'):
    kernel_begin(a, name)
    a(f"s_cmp_ge_u32 s2, {K0_GRID}")
    a("s_cbranch_scc1 K0_END")
    a(f"s_load_dwordx2 s[4:5], s[0:1], {KA_X}")
    a(f"s_load_dwordx2 s[6:7], s[0:1], {KA_WS}")
    a(f"s_load_dwordx4 s[8:11], s[0:1], {KA_C}")
    a("v_and_b32 v1, 63, v0")
    a("v_lshrrev_b32 v2, 6, v0")
    a(f"s_cmp_ge_u32 s2, {K0_NLN}")
    a("s_cbranch_scc1 K0_MOD")
    a("v_and_b32 v3, 15, v1")
    a("v_lshrrev_b32 v4, 4, v1")
    a("v_lshlrev_b32 v5, 10, v3")
    a("v_lshl_add_u32 v5, v2, 7, v5")
    a("v_lshl_add_u32 v5, v4, 4, v5")
    a("s_lshl_b32 s3, s2, 14")
    a("s_waitcnt lgkmcnt(0)")
    srd(a, 12, 4, 2048*512*2)
    srd(a, 16, 6, 2048*512*2, WS_XF)
    a("buffer_load_dwordx4 v[8:11], v5, s[12:15], s3 offen")
    a("buffer_load_dwordx4 v[12:15], v5, s[12:15], s3 offen offset:64")
    srd(a, 24, 6, FL_SIZE, WS_FLAG)
    a("v_lshlrev_b32 v6, 2, v0")
    a("v_mov_b32 v7, 0")
    a("s_lshl_b32 s20, s2, 11")
    a("buffer_store_dword v7, v6, s[24:27], s20 offen")
    a("v_lshlrev_b32 v6, 2, v3")
    a("v_lshl_add_u32 v7, v2, 6, v6")
    a("s_waitcnt vmcnt(0)")
    unpack8(a, 8, 16); unpack8(a, 12, 24)
    a("v_add_f32 v32, v16, v17")
    for i in range(18, 32): a(f"v_add_f32 v32, v32, v{i}")
    allreduce(a, [32], [33], steps=(16, 32))
    a("ds_write_b32 v7, v32")
    a("s_waitcnt lgkmcnt(0)")
    a("s_barrier")
    for w in range(8): a(f"ds_read_b32 v{40+w}, v6 offset:{w*64}")
    a("s_waitcnt lgkmcnt(0)")
    a("v_add_f32 v32, v40, v41")
    for w in range(2, 8): a(f"v_add_f32 v32, v32, v{40+w}")
    a(f"v_mul_f32 v32, {f32(1/512)}, v32")
    for i in range(16): a(f"v_sub_f32 v{48+i}, v{16+i}, v32")
    a("v_mul_f32 v34, v48, v48")
    for i in range(1, 16): a(f"v_fmac_f32 v34, v{48+i}, v{48+i}")
    allreduce(a, [34], [33], steps=(16, 32))
    a("ds_write_b32 v7, v34 offset:512")
    a("s_waitcnt lgkmcnt(0)")
    a("s_barrier")
    for w in range(8): a(f"ds_read_b32 v{40+w}, v6 offset:{512+w*64}")
    rnd_bf16(a, 32)
    for i in range(16): a(f"v_sub_f32 v{48+i}, v{16+i}, v32")
    rnd_pairs(a, list(range(48, 64)))
    a("s_waitcnt lgkmcnt(0)")
    a("v_add_f32 v34, v40, v41")
    for w in range(2, 8): a(f"v_add_f32 v34, v34, v{40+w}")
    a(f"v_mul_f32 v34, {f32(1/512)}, v34")
    rnd_bf16(a, 34)
    a(f"v_add_f32 v34, {f32(EPS)}, v34")
    rnd_bf16(a, 34)
    a("v_sqrt_f32 v34, v34")
    a("s_nop 0")
    rnd_bf16(a, 34)
    a("v_rcp_f32 v34, v34")
    a("s_nop 0")
    for i in range(16): a(f"v_mul_f32 v{48+i}, v{48+i}, v34")
    rnd_pairs(a, list(range(48, 64)))
    for i in range(8): a(f"v_cvt_pkrtz_f16_f32 v{8+i}, v{48+2*i}, v{49+2*i}")
    a("v_lshlrev_b32 v5, 4, v1")
    a("v_lshl_add_u32 v5, v2, 18, v5")
    a("s_lshl_b32 s3, s2, 10")
    a("s_add_u32 s20, s3, 131072")
    a("buffer_store_dwordx4 v[8:11], v5, s[16:19], s3 offen")
    a("buffer_store_dwordx4 v[12:15], v5, s[16:19], s20 offen")
    a("s_endpgm")
    a.label("K0_MOD")
    a(f"s_sub_u32 s3, s2, {K0_NLN}")
    a("v_and_b32 v3, 7, v0")
    a("v_lshrrev_b32 v4, 3, v0")
    a("s_movk_i32 s20, 6144")
    a("v_mul_lo_u32 v5, v4, s20")
    a("v_lshl_add_u32 v5, v3, 4, v5")
    a("s_lshl_b32 s21, s3, 7")
    a("v_lshlrev_b32 v6, 1, v0")
    a("s_waitcnt lgkmcnt(0)")
    srd(a, 12, 8, 1024)
    srd(a, 16, 10, 512*3072*2)
    srd(a, 24, 6, 0x6000)
    a("buffer_load_ushort v7, v6, s[12:15], 0 offen")
    for i in range(8):
        a(f"buffer_load_dwordx4 v[{16+4*i}:{19+4*i}], v5, s[16:19], s21 offen")
        if i < 7: a(f"s_add_u32 s21, s21, {64*6144}")
    a("s_waitcnt vmcnt(8)")
    a("v_lshlrev_b32 v7, 16, v7")
    a(f"v_mul_f32 v8, {f32(-math.log2(math.e))}, v7")
    a("v_exp_f32 v8, v8")
    a("s_nop 0")
    a("v_add_f32 v8, 1.0, v8")
    a("v_rcp_f32 v8, v8")
    a("s_nop 0")
    a("v_mul_f32 v8, v7, v8")
    rnd_bf16(a, 8)
    a("v_lshlrev_b32 v9, 2, v0")
    a("ds_write_b32 v9, v8")
    a("v_lshlrev_b32 v9, 2, v4")
    a("s_waitcnt lgkmcnt(0)")
    a("s_barrier")
    for i in range(8): a(f"ds_read_b32 v{48+i}, v9 offset:{i*256}")
    a("s_waitcnt lgkmcnt(0)")
    for i in range(8):
        a(f"s_waitcnt vmcnt({7-i})")
        unpack8(a, 16+4*i, 64)
        for e in range(8):
            if i == 0: a(f"v_mul_f32 v{56+e}, v{48+i}, v{64+e}")
            else: a(f"v_fmac_f32 v{56+e}, v{48+i}, v{64+e}")
    a("s_movk_i32 s20, 272")
    a("v_mul_lo_u32 v9, v4, s20")
    a("v_lshl_add_u32 v9, v3, 5, v9")
    a("ds_write_b128 v9, v[56:59] offset:2048")
    a("ds_write_b128 v9, v[60:63] offset:2064")
    a("v_and_b32 v10, 63, v0")
    a("v_mul_lo_u32 v11, v2, s20")
    a("v_lshlrev_b32 v11, 3, v11")
    a("v_lshl_add_u32 v11, v10, 2, v11")
    a("s_waitcnt lgkmcnt(0)")
    a("s_barrier")
    for i in range(8): a(f"ds_read_b32 v{48+i}, v11 offset:{2048+i*272}")
    a("s_waitcnt lgkmcnt(0)")
    a("v_add_f32 v56, v48, v49")
    for i in range(2, 8): a(f"v_add_f32 v56, v56, v{48+i}")
    a("v_lshlrev_b32 v9, 2, v0")
    a(f"ds_write_b32 v9, v56 offset:{2048+64*272}")
    a("s_waitcnt lgkmcnt(0)")
    a("s_barrier")
    a("v_cmp_gt_u32 vcc, 64, v0")
    a("s_and_saveexec_b64 s[22:23], vcc")
    a("s_cbranch_execz K0_END")
    for i in range(8): a(f"ds_read_b32 v{48+i}, v9 offset:{2048+64*272+i*256}")
    a("s_waitcnt lgkmcnt(0)")
    a("v_add_f32 v56, v48, v49")
    for i in range(2, 8): a(f"v_add_f32 v56, v56, v{48+i}")
    rnd_bf16(a, 56)
    a("s_lshl_b32 s21, s3, 8")
    a("buffer_store_dword v56, v9, s[24:27], s21 offen")
    a("s_cmp_ge_u32 s3, 16")
    a("s_cbranch_scc1 K0_END")
    a("s_and_b32 s21, s3, 7")
    a("s_lshl_b32 s21, s21, 9")
    a("v_lshrrev_b32 v10, 3, v0")
    a("v_lshlrev_b32 v10, 6, v10")
    a("v_lshl_add_u32 v10, v3, 2, v10")
    a("v_add_f32 v57, 1.0, v56")
    rnd_bf16(a, 57)
    a("s_cmp_ge_u32 s3, 8")
    a("s_cselect_b32 s20, 0, 32")
    a("s_cselect_b64 vcc, -1, 0")
    a("s_add_u32 s21, s21, s20")
    a(f"s_add_u32 s21, s21, {WS_MODQ}")
    a("v_cndmask_b32 v56, v56, v57, vcc")
    a(f"v_mul_f32 v56, {f32(CS)}, v56")
    a("buffer_store_dword v56, v10, s[24:27], s21 offen")
    a.label("K0_END")
    a("s_endpgm")
    return kernel_desc(name, 72, 32, 72)
```

```python
from asmlib import *
from common import *
from sched import *

MFMA = "v_mfma_f32_16x16x32_bf16"
KA, VA, DK, DV, WA, WAH, DW, XV, MA = 8, 12, 20, 22, 24, 28, 32, 33, 34
Q = 40
S = [104, 136]
P = [168, 184]
NEG, LS, ONES, TMP = 200, 216, 232, 236
XR, HB, MQ = 40, [168, 184], [200, 216]
FSET = [128, 160]
sK, sV, sWL, sXO, sCNT = 39, 40, 41, 42, 46
LDS_V = 65536
LDS_MQ = 131072
LDS_VOTE = LDS_MQ + 4096
K2_LDS = LDS_VOTE + 64
WQ_REGION = [0, 16384, 65536, 32768, 81920, 49152, 98304, 114688]

def kfrag_reads(fs, j, unit):
    kt, st = j // 4, j % 4
    f = FSET[fs] + 4*j
    return [I(f"ds_read_b128 a[{f}:{f+3}], v{KA+st} offset:{(unit % 8)*8192 + kt*4096}", l=('K', unit, j))]
def vfrag_reads(fs, j, unit):
    f = FSET[fs] + 4*j
    o = (unit % 8)*8192
    return [I(f"ds_read_b64_tr_b16 a[{f}:{f+1}], v{VA+j} offset:{o}", l=('V', unit, j)),
            I(f"ds_read_b64_tr_b16 a[{f+2}:{f+3}], v{VA+j} offset:{o+4096}", l=('V', unit, j))]

def qk_half(fs, sb, czero=False):
    mf = []
    for j in range(8):
        kt, st = j // 4, j % 4
        f = FSET[fs] + 4*j
        for g in range(4):
            d = S[sb] + g*8 + kt*4
            q = Q + (g*4 + st)*4
            c = ('0' if czero else vr(NEG + g*4, 4)) if st == 0 else vr(d, 4)
            mf.append((f"{MFMA} {vr(d,4)}, a[{f}:{f+3}], {vr(q,4)}, {c}", (j, g)))
    return mf
def pv_half(fs, pb, czero=False):
    mf = []
    for j in range(8):
        f = FSET[fs] + 4*j
        for g in range(4):
            o = (j*4 + g)*4
            p = P[pb] + g*4
            mf.append((f"{MFMA} {ar(o,4)}, a[{f}:{f+3}], {vr(p,4)}, {'0' if czero else ar(o,4)}", (j, g)))
        if j % 2 == 1:
            g = j // 2
            p = P[pb] + g*4
            mf.append((f"{MFMA} {vr(LS+g*4,4)}, {vr(ONES,4)}, {vr(p,4)}, {'0' if czero else vr(LS+g*4,4)}", None))
    return mf

def sm_stream(sb, pb):
    st = []
    for i in range(32):
        st.append((f"v_exp_f32 v{TMP + i % 8}, v{S[sb]+i}", 8))
        if i >= 3 and i % 2 == 1:
            st.append((f"v_cvt_pk_bf16_f32 v{P[pb]+(i-3)//2}, v{TMP+(i-3)%8}, v{TMP+(i-2)%8}", 4))
    st.append((f"v_cvt_pk_bf16_f32 v{P[pb]+15}, v{TMP+6}, v{TMP+7}", 4))
    return st

def dma_unit(kind, unit):
    base = (unit % 8)*8192 + (0 if kind == 'K' else LDS_V)
    srdn, sreg, vo = ((12, sK, DK) if kind == 'K' else (16, sV, DV))
    tag = (kind, unit)
    return [(f"s_add_u32 m0, s{sWL}, {base}", I(f"buffer_load_dwordx4 v{vo}, s[{srdn}:{srdn+3}], s{sreg} offen lds", v=tag), None),
            (None, I(f"buffer_load_dwordx4 v{vo+1}, s[{srdn}:{srdn+3}], s{sreg} offen offset:1024 lds", v=tag), f"s_add_u32 s{sreg}, s{sreg}, 8192")]

def dma_plain(p, ops):
    for (sb, mem, sa) in ops:
        if sb: p(sb); p("s_nop 0")
        p(mem)
        if sa: p(sa)

def block(halves, dmas=()):
    mf = []; gaps = []; pos = {}
    for hi, (m, usetag, pf) in enumerate(halves):
        for (t, jg) in m:
            if jg is not None: pos[(hi,) + jg] = len(mf)
            mf.append(t); gaps.append(Gap())
    pre = []
    for hi, (m, usetag, pf) in enumerate(halves):
        for j in range(8):
            if pf is not None:
                g = gaps[pos[(hi, j, 0)]]
                for r in pf(j): g.mem.append(r); g.used += 4
            if j % 4 == 0:
                w = WL({usetag + (jj,) for jj in range(j, j+4)})
                i = pos[(hi, j, 0)]
                if i == 0: pre.append(w)
                else: gaps[i-1].salu.append(w)
    slots = [(0, 1), (0, 2), (0, 5), (0, 6)] if len(halves) == 1 else [(0, 1), (0, 5), (1, 1), (1, 5)]
    for (sb, mem, sa), hj in zip(dmas, slots):
        if sb: gaps[pos[hj + (1,)]].salu.append(sb)
        g = gaps[pos[hj + (2,)]]
        g.mem.append(mem); g.used += 8
        if sa: gaps[pos[hj + (3,)]].salu.append(sa)
    assert len(dmas) <= len(slots)
    return pre, mf, gaps, pos

def tile_max(p, extra=None):
    for g in range(4):
        b = S[0] + g*8
        p(f"v_max3_f32 v{TMP+g}, v{b}, v{b+1}, v{b+2}")
        p(f"v_max3_f32 v{TMP+g}, v{TMP+g}, v{b+3}, v{b+4}")
        p(f"v_max3_f32 v{TMP+g}, v{TMP+g}, v{b+5}, v{b+6}")
        if extra is None: p(f"v_max_f32 v{TMP+g}, v{TMP+g}, v{b+7}")
        else: p(f"v_max3_f32 v{TMP+g}, v{TMP+g}, v{b+7}, v{extra+g}")
    allreduce(p, [TMP+g for g in range(4)], [TMP+4+g for g in range(4)], op='v_max_f32', steps=(16, 32))

def k2(a, name='k2_kernel', force_slow=False):
    kernel_begin(a, name)
    p = Prog()
    p("s_cmp_ge_u32 s2, 256")
    p("s_cbranch_scc1 K2_END")
    p(f"s_load_dwordx4 s[4:7], s[0:1], {KA_K}")
    p(f"s_load_dwordx2 s[8:9], s[0:1], {KA_WQ}")
    p(f"s_load_dwordx2 s[10:11], s[0:1], {KA_WS}")
    p(f"s_load_dwordx2 s[54:55], s[0:1], {KA_WO}")
    p(f"s_load_dwordx4 s[56:59], s[0:1], {KA_WG}")
    p(f"s_load_dwordx2 s[60:61], s[0:1], {KA_WD}")
    p("v_and_b32 v1, 63, v0")
    p("v_lshrrev_b32 v2, 6, v0")
    p("v_and_b32 v3, 15, v1")
    p("v_readfirstlane_b32 s36, v2")
    p("v_lshrrev_b32 v4, 4, v1")
    import sys
    if 'mapX' in sys.argv:
        p("s_lshr_b32 s37, s2, 3"); p("s_and_b32 s38, s2, 7")
    elif 'mapY' in sys.argv:
        p("s_bfe_u32 s37, s2, 0x10002"); p("s_lshl_b32 s37, s37, 4"); p("s_lshr_b32 s47, s2, 4"); p("s_add_u32 s37, s37, s47")
        p("s_and_b32 s38, s2, 3"); p("s_lshl_b32 s38, s38, 1"); p("s_bfe_u32 s47, s2, 0x10003"); p("s_add_u32 s38, s38, s47")
    else:
        p("s_and_b32 s37, s2, 7")
        p("s_lshl_b32 s37, s37, 2")
        p("s_bfe_u32 s47, s2, 0x20003")
        p("s_add_u32 s37, s37, s47")
        p("s_lshr_b32 s38, s2, 5")
    p(f"s_lshl_b32 s{sWL}, s36, 11")
    p("v_lshlrev_b32 v5, 2, v4")
    p("v_xor_b32 v5, v3, v5")
    p("v_lshlrev_b32 v5, 4, v5")
    p(f"v_lshl_add_u32 v{DW}, v4, 13, v5")
    p(f"v_lshlrev_b32 v{XV}, 4, v1")
    p("s_waitcnt lgkmcnt(0)")
    p("s_lshl_b32 s47, s37, 19")
    p("s_add_u32 s12, s4, s47"); p("s_addc_u32 s13, s5, 0"); p("s_mov_b32 s14, 0x80000"); p("s_mov_b32 s15, 0x20000")
    p("s_add_u32 s16, s6, s47"); p("s_addc_u32 s17, s7, 0"); p("s_mov_b32 s18, 0x80000"); p("s_mov_b32 s19, 0x20000")
    srd(p, 20, 8, 512*4096*2)
    srd(p, 24, 10, 2048*512*2, WS_XF)
    srd(p, 28, 10, 2048*4096*2, WS_OF)
    srd(p, 32, 10, 4096, WS_MODQ)
    srd(p, 64, 54, 4096*512*2)
    srd(p, 68, 56, 512*1792*2); srd(p, 72, 58, 512*1792*2); srd(p, 76, 60, 512*1792*2)
    p("s_bfe_u32 s80, s2, 0x10002"); p("s_lshl_b32 s80, s80, 21"); p("s_lshr_b32 s47, s2, 3"); p("s_lshl_b32 s47, s47, 16")
    p("s_add_u32 s80, s80, s47"); p("s_lshl_b32 s47, s36, 14"); p("s_add_u32 s80, s80, s47")
    p("s_mul_i32 s81, s2, 7168")
    p("s_cmp_eq_u32 s36, 0"); p("s_cselect_b32 s84, s68, s72"); p("s_cselect_b32 s85, s69, s73")
    p("s_cmp_eq_u32 s36, 2"); p("s_cselect_b32 s84, s76, s84"); p("s_cselect_b32 s85, s77, s85")
    p("s_cmp_eq_u32 s36, 3"); p(f"s_cselect_b32 s86, 0, {512*1792*2}"); p("s_mov_b32 s87, 0x20000")
    p("s_lshl_b32 s47, s36, 10")
    p(f"s_add_u32 m0, s47, {LDS_MQ}")
    p("s_lshl_b32 s48, s37, 8")
    p(f"buffer_load_dwordx4 v{XV}, s[32:35], s47 offen lds", v='MQ')
    p("s_lshl_b32 s47, s36, 17")
    p("s_add_u32 s48, s48, s47")
    p("s_lshl_b32 s49, s36, 12")
    p("s_lshl_b32 s47, s38, 4"); p("s_lshl_b32 s50, s36, 2"); p("s_add_u32 s51, s47, s50")
    p(f"s_lshl_b32 s{sXO}, s51, 10")
    def wq_dma(c):
        return [(f"s_add_u32 m0, s49, {WQ_REGION[c] + i*1024}", f"s_add_u32 s50, s48, {(64*c + 4*i)*8192}",
                 I(f"buffer_load_dwordx4 v{DW}, s[20:23], s50 offen lds", v=('W', c))) for i in range(4)]
    def x_load(ks, g):
        r = XR + (ks % 8)*16 + g*4
        return I(f"buffer_load_dwordx4 {vr(r,4)}, v{XV}, s[24:27], s{sXO} offen offset:{g*1024}", v=('X', ks))
    def x_bump():
        return [f"s_add_u32 s{sXO}, s{sXO}, 131072"]
    for c in range(6):
        for (s1, s2, m) in wq_dma(c): p(s1); p(s2); p(m)
        if c < 4:
            for ks in (2*c, 2*c+1):
                for g in range(4): p(x_load(ks, g))
                p(x_bump())
    for s_ in range(4):
        p(f"v_add_u32 v5, {4*s_}, v4")
        p("v_xor_b32 v5, v5, v3")
        p("v_lshlrev_b32 v5, 4, v5")
        p(f"v_lshl_add_u32 v{KA+s_}, v3, 8, v5")
    p("v_lshrrev_b32 v6, 2, v3")
    p("v_lshl_add_u32 v7, v4, 2, v6")
    p("v_and_b32 v36, 7, v7")
    p("v_lshlrev_b32 v36, 1, v36")
    p("v_bfe_u32 v37, v3, 1, 1")
    p("v_and_b32 v38, 1, v3")
    p("v_lshlrev_b32 v38, 3, v38")
    p("v_lshl_add_u32 v38, v7, 8, v38")
    p(f"v_add_u32 v38, {LDS_V}, v38")
    for dt in range(8):
        p(f"v_add_u32 v5, {2*dt}, v37")
        p("v_xor_b32 v5, v5, v36")
        p(f"v_lshl_add_u32 v{VA+dt}, v5, 4, v38")
    p("v_lshl_add_u32 v7, v2, 3, v4")
    for i in range(2):
        p(f"v_add_u32 v5, {4*i}, v7")
        p("v_and_b32 v5, 15, v5")
        p("v_xor_b32 v5, v5, v3")
        p("v_lshlrev_b32 v5, 4, v5")
        p(f"v_lshl_add_u32 v{DK+i}, v7, 8, v5")
        p(f"v_add_u32 v5, {4*i}, v4")
        p("v_lshlrev_b32 v5, 1, v5")
        p("v_xor_b32 v5, v5, v3")
        p("v_lshlrev_b32 v5, 4, v5")
        p(f"v_lshl_add_u32 v{DV+i}, v7, 8, v5")
    p("v_lshl_add_u32 v7, v4, 3, v6")
    p("v_and_b32 v36, 3, v3")
    for s_ in range(4):
        p(f"v_xor_b32 v5, {s_}, v6")
        p("v_lshl_add_u32 v5, v5, 2, v36")
        p("v_lshlrev_b32 v5, 4, v5")
        p(f"v_lshl_add_u32 v{WA+s_}, v7, 8, v5")
        p(f"v_add_u32 v{WAH+s_}, 0x10000, v{WA+s_}")
    p(f"v_lshlrev_b32 v{MA}, 6, v4")
    p(f"v_add_u32 v{MA}, {LDS_MQ}, v{MA}")
    p(f"s_mov_b32 s{sK}, 0"); p(f"s_mov_b32 s{sV}, 0")
    for r in range(4): p(f"v_mov_b32 v{ONES+r}, 0x3f803f80")

    def wfrag_reads(fs, j, ks):
        c, kh = ks // 2, ks % 2
        s_, par = j // 2, j % 2
        reg = WQ_REGION[c]
        av = (WA if reg < 65536 else WAH) + s_
        o = (reg % 65536) + kh*8192 + par*8
        f = FSET[fs] + 4*j
        return [I(f"ds_read_b64_tr_b16 a[{f}:{f+1}], v{av} offset:{o}", l=('F', ks, j)),
                I(f"ds_read_b64_tr_b16 a[{f+2}:{f+3}], v{av} offset:{o+1024}", l=('F', ks, j))]
    def mq_reads(ks):
        b = MQ[ks % 2]
        return [I(f"ds_read_b128 {vr(b+4*i,4)}, v{MA} offset:{ks*256 + i*16}", l=('MQ', ks)) for i in range(4)]
    def mod_stream(ks):
        st = []
        b = MQ[ks % 2]
        for g in range(4):
            for r in range(4):
                x = XR + (ks % 8)*16 + g*4 + r
                t0 = TMP + ((g*4 + r) % 4)*2
                st.append((f"v_fma_mix_f32 v{t0}, v{x}, v{b+2*r}, v{b+8+2*r} op_sel_hi:[1,0,0]", 4))
                st.append((f"v_fma_mix_f32 v{t0+1}, v{x}, v{b+2*r+1}, v{b+8+2*r+1} op_sel:[1,0,0] op_sel_hi:[1,0,0]", 4))
                st.append((f"v_cvt_pk_bf16_f32 v{HB[ks%2]+g*4+r}, v{t0}, v{t0+1}", 4))
        return st
    p(WV({('W', 0), 'MQ'}))
    p("s_barrier")
    p("; MARKA")
    p(mq_reads(0)); p(mq_reads(1))
    for j in range(8): p(wfrag_reads(0, j, 0))
    p(WV({('X', 0)}))
    p(WL({('MQ', 0)}))
    for t, _ in mod_stream(0): p(t)
    p("; MARKD")
    kv_after = {3: [('K', 0), ('K', 1)], 5: [('K', 2), ('K', 3)], 7: [('V', 0), ('V', 1)], 9: [('K', 4), ('K', 5)],
                11: [('V', 2), ('V', 3)], 13: [('K', 6)]}
    for ks in range(16):
        fs = ks % 2
        mf = []
        for j in range(8):
            f = FSET[fs] + 4*j
            for g in range(4):
                o = (j*4 + g)*4
                mf.append((f"{MFMA} {ar(o,4)}, a[{f}:{f+3}], {vr(HB[ks%2]+g*4,4)}, {'0' if ks == 0 else ar(o,4)}", (j, g)))
        pre = []
        if ks % 2 == 1 and ks < 15:
            pre += [WV({('W', (ks+1)//2), ('X', ks+1)}), "s_barrier"]
        elif ks < 15:
            pre.append(WV({('X', ks+1)}))
        if ks < 15: pre.append(WL({('MQ', ks+1)}))
        pf = (lambda j, ks=ks: wfrag_reads(1 - ks % 2, j, ks+1)) if ks < 15 else None
        dm = sum([dma_unit(k, u) for (k, u) in kv_after.get(ks, [])], [])
        pw, mfl, gaps, pos = block([(mf, ('F', ks), pf)], dmas=dm)
        extra = []
        if ks + 2 < 16: extra += [('L', r) for r in mq_reads(ks+2)]
        if 1 <= ks and ks + 7 < 16: extra += [('V', x_load(ks+7, g)) for g in range(4)]
        if ks in (0, 2): extra += [('W', x) for x in wq_dma(6 + ks//2)]
        cand = [pos[(0, j, 3)] for j in range(8)] + [pos[(0, j, 1)] for j in range(8)] + [pos[(0, j, 2)] for j in range(8)]
        cand = [i for i in cand if gaps[i].used == 0 and not gaps[i].salu]
        assert len(extra) <= len(cand), (ks, len(extra), len(cand))
        for (kind, op), i in zip(extra, cand):
            if kind == 'W':
                gaps[i].salu += [op[0], op[1]]; gaps[i].mem.append(op[2]); gaps[i].used += 12
            else:
                gaps[i].mem.append(op); gaps[i].used += 4 if kind == 'L' else 8
        if ks < 15: fill(gaps, mod_stream(ks+1))
        if ks + 7 < 16 and ks >= 1: gaps[-1].valu += x_bump()
        p(pre); p(pw)
        emit_stream(p, mfl, gaps)
    p(WV({('K', 0), ('K', 1), ('K', 2), ('K', 3), ('V', 0)}))
    p("s_barrier")
    p("; MARKB")
    for j in range(8): p(kfrag_reads(0, j, 0))
    dma_plain(p, dma_unit('V', 4))
    for g in range(4):
        for s_ in range(4):
            for h in range(2):
                o = ((2*s_ + h)*4 + g)*4
                for r in range(4): p(f"v_accvgpr_read_b32 v{TMP + (h*4 + r)}, a{o+r}")
            for k in range(4): p(f"v_cvt_pk_bf16_f32 v{Q+(g*4+s_)*4+k}, v{TMP+2*k}, v{TMP+2*k+1}")
    p.nop(2)
    if force_slow: p("s_branch K2_SLOW")
    pw, mfl, gaps, pos = block([(qk_half(0, 0, czero=True), ('K', 0), lambda j: kfrag_reads(1, j, 1))])
    p(pw); emit_stream(p, mfl, gaps)
    p.nop(8)
    tile_max(p)
    for g in range(4):
        for r in range(4): p(f"v_sub_f32 v{NEG+g*4+r}, 0, v{TMP+g}")
        for r in range(8): p(f"v_sub_f32 v{S[0]+g*8+r}, v{S[0]+g*8+r}, v{TMP+g}")
    p.nop(2)

    def period(u, tail=(), vm=12):
        if u == 0:
            halves = [(qk_half(1, 1), ('K', 1), lambda j: kfrag_reads(0, j, 2))]
        elif u <= 62:
            halves = [(qk_half(0, (u+1) % 2), ('K', u+1), lambda j: vfrag_reads(1, j, u-1)),
                      (pv_half(1, (u-1) % 2, czero=(u == 1)), ('V', u-1),
                       (lambda j: kfrag_reads(0, j, u+2)) if u <= 61 else (lambda j: vfrag_reads(0, j, 62)))]
        elif u == 63:
            halves = [(pv_half(0, 0), ('V', 62), lambda j: vfrag_reads(1, j, 63))]
        else:
            halves = [(pv_half(1, 1), ('V', 63), None)]
        if u % 2 == 0: units = [('K', x) for x in (u+7, u+8) if u <= 56]
        else: units = [('V', x) for x in (u+4, u+5) if x <= 63]
        dm = sum([dma_unit(k, x) for (k, x) in units], [])
        tl = list(tail)
        if u % 2 == 1 and u <= 61:
            if vm == 'A': w = WV({('K', 63), ('K', 64), ('V', 60)})
            elif vm == 'B': w = WV({('V', 61), ('V', 62), ('V', 63)})
            else: w = f"s_waitcnt vmcnt({vm})"
            tl = [w, "s_barrier"] + tl
        pw, mfl, gaps, pos = block(halves, dmas=dm)
        pf = []
        if 'nopf' not in sys.argv:
            if u == 4:
                pf = [(f"buffer_load_dwordx4 v[244:247], v{XV}, s[84:87], s81 offen", "s_add_u32 s81, s81, 1024")]
            if 58 <= u <= 63:
                n0 = {58: 0, 59: 3, 60: 5, 61: 8, 62: 11, 63: 14}[u]; n1 = {58: 3, 59: 5, 60: 8, 61: 11, 62: 14, 63: 16}[u]
                for n in range(n0, n1):
                    pf.append((f"buffer_load_dwordx4 v[{244+4*(n%3)}:{247+4*(n%3)}], v{XV}, s[64:67], s80 offen offset:{(n%4)*1024}",
                               "s_add_u32 s80, s80, 4096" if n % 4 == 3 else None))
        cand = [pos[(len(halves)-1, j, 2)] for j in (2, 4, 6)]
        for (m, sa), i in zip(pf, cand):
            assert gaps[i].used == 0
            gaps[i].mem.append(I(m, v=('PF', 0))); gaps[i].used += 8
            if sa: gaps[i+1].salu.append(sa)
        if u <= 63: fill(gaps, sm_stream(u % 2, u % 2))
        gaps[-1].valu += tl
        p(pw); emit_stream(p, mfl, gaps)

    period(0)
    p(f"s_mov_b32 s{sCNT}, 0")
    saved = {}
    def chk_b1(st):
        q = st['vq']; old = q[:max(0, len(q)-12)]; young = q[max(0, len(q)-12):]
        for t in young: assert not (t[0] == 'K' and t[1] <= 5) and not (t[0] == 'V' and t[1] <= 2), q
    period(1)
    p(Call(lambda st: saved.__setitem__('e', list(st['lq']))))
    p(".p2align 6")
    p.label("K2_LOOP")
    for u in range(2, 10):
        if u == 9: period(u, tail=[f"s_add_u32 s{sCNT}, s{sCNT}, 1", f"s_cmp_lt_u32 s{sCNT}, 7", "s_cbranch_scc1 K2_LOOP"])
        else: period(u)
    def loop_exit(st):
        ex = [(k, un - 8, j) for (k, un, j) in st['lq']]
        assert ex == saved['e'], (ex, saved['e'])
        st['lq'][:] = [(k, un + 48, j) for (k, un, j) in st['lq']]
        st['vq'][:] = [(k, un + 48) for (k, un) in st['vq']]
        assert ('K', 64) in st['vq'], st['vq']
    p(Call(loop_exit))
    period(58); period(59, vm='A'); period(60); period(61, vm='B'); period(62); period(63)
    p.nop(2)
    period(64)
    p("; MARKC")
    p.nop(8)
    p(f"v_mov_b32 v{TMP}, {f32(2.0**40)}")
    p("s_mov_b64 s[52:53], 0")
    for g in range(4):
        p(f"v_cmp_nle_f32 vcc, v{LS+g*4}, v{TMP}")
        p("s_or_b64 s[52:53], s[52:53], vcc")
    p("s_cmp_lg_u64 s[52:53], 0")
    p("s_cselect_b32 s47, 1, 0")
    p(f"v_mov_b32 v{TMP+1}, s47")
    p(f"v_lshlrev_b32 v{TMP+2}, 2, v2")
    p(f"v_add_u32 v{TMP+2}, {LDS_VOTE}, v{TMP+2}")
    p(f"ds_write_b32 v{TMP+2}, v{TMP+1}")
    p(f"v_mov_b32 v{TMP+2}, {LDS_VOTE}")
    p("s_waitcnt lgkmcnt(0)")
    p("s_barrier")
    p(f"ds_read_b128 {vr(TMP+4,4)}, v{TMP+2}")
    p("s_waitcnt lgkmcnt(0)")
    p(f"v_or_b32 v{TMP+4}, v{TMP+4}, v{TMP+5}")
    p(f"v_or3_b32 v{TMP+4}, v{TMP+4}, v{TMP+6}, v{TMP+7}")
    p("s_nop 0")
    p(f"v_readfirstlane_b32 s47, v{TMP+4}")
    p("s_cmp_lg_u32 s47, 0")
    p("s_cbranch_scc1 K2_SLOW")
    p.label("K2_EPI")
    for g in range(4): p(f"v_rcp_f32 v{NEG+g}, v{LS+g*4}")
    p("s_lshl_b32 s47, s51, 10")
    p("s_lshl_b32 s48, s37, 19")
    p("s_add_u32 s47, s47, s48")
    k = 0
    for s_ in range(4):
        for g in range(4):
            t = S[0] + (k % 4)*12; k += 1
            for h in range(2):
                o = ((2*s_ + h)*4 + g)*4
                for r in range(4): p(f"v_accvgpr_read_b32 v{t + h*4 + r}, a{o+r}")
            for r in range(8): p(f"v_mul_f32 v{t+r}, v{t+r}, v{NEG+g}")
            for r in range(4): p(f"v_cvt_pk_bf16_f32 v{t+8+r}, v{t+2*r}, v{t+2*r+1}")
            p(f"buffer_store_dwordx4 {vr(t+8,4)}, v{XV}, s[28:31], s47 offen offset:{g*1024}")
        if s_ < 3: p("s_add_u32 s47, s47, 131072")
    p.label("K2_END")
    p("s_endpgm")
    p.label("K2_SLOW")
    MX = TMP + 8
    AL = TMP + 12
    for r in range(128): p(f"v_accvgpr_write_b32 a{r}, 0")
    for r in range(16): p(f"v_mov_b32 v{LS+r}, 0")
    for g in range(4): p(f"v_mov_b32 v{MX+g}, 0xff800000")
    p(f"s_mov_b32 s{sK}, 0"); p(f"s_mov_b32 s{sV}, 0"); p(f"s_mov_b32 s{sCNT}, 0")
    p.label("K2_SLOOP")
    p("s_waitcnt vmcnt(0) lgkmcnt(0)")
    p("s_barrier")
    dma_plain(p, dma_unit('K', 0)); dma_plain(p, dma_unit('V', 0))
    p("s_waitcnt vmcnt(0)")
    p("s_barrier")
    for j in range(8): p(kfrag_reads(0, j, 0))
    p("s_waitcnt lgkmcnt(0)")
    for j in range(8):
        p(vfrag_reads(1, j, 0))
        if j == 5: p("s_waitcnt lgkmcnt(0)")
    for t, _ in qk_half(0, 0, czero=True): p(t)
    p.nop(8)
    tile_max(p, extra=MX)
    for g in range(4):
        p(f"v_sub_f32 v{AL+g}, v{MX+g}, v{TMP+g}")
        p(f"v_mov_b32 v{MX+g}, v{TMP+g}")
    for g in range(4): p(f"v_exp_f32 v{AL+g}, v{AL+g}")
    for i in range(32): p(f"v_sub_f32 v{S[0]+i}, v{S[0]+i}, v{MX+i//8}")
    for i in range(32): p(f"v_exp_f32 v{S[0]+i}, v{S[0]+i}")
    p("s_nop 0")
    for i in range(16): p(f"v_cvt_pk_bf16_f32 v{P[0]+i}, v{S[0]+2*i}, v{S[0]+2*i+1}")
    for g in range(4):
        for r in range(4): p(f"v_mul_f32 v{LS+g*4+r}, v{LS+g*4+r}, v{AL+g}")
    for j in range(8):
        for g in range(4):
            o = (j*4 + g)*4
            for r in range(4): p(f"v_accvgpr_read_b32 v{TMP+r}, a{o+r}")
            for r in range(4): p(f"v_mul_f32 v{TMP+r}, v{TMP+r}, v{AL+g}")
            for r in range(4): p(f"v_accvgpr_write_b32 a{o+r}, v{TMP+r}")
    p("s_waitcnt lgkmcnt(0)")
    p.nop(2)
    for t, _ in pv_half(1, 0): p(t)
    p.nop(8)
    p(f"s_add_u32 s{sCNT}, s{sCNT}, 1"); p(f"s_cmp_lt_u32 s{sCNT}, 64"); p("s_cbranch_scc1 K2_SLOOP")
    p("s_branch K2_EPI")
    p.resolve(a)
    return kernel_desc(name, 512, 92, 256)
```

```python
from asmlib import *
from common import *
from sched import *
from k0 import rnd_bf16, unpack8, rnd_pairs

MFMA = "v_mfma_f32_16x16x32_bf16"
NR = 6
K3_LDS = 4*NR*4096
RS = 272

def k3(a, name='k3_kernel'):
    kernel_begin(a, name)
    p = Prog()
    AA, DWO, XV = 8, 12, 16
    GA, XX = 20, 36
    ACC = 44
    AF = [108, 124]
    OFR = 140
    p("s_cmp_ge_u32 s2, 256")
    p("s_cbranch_scc1 K3_END")
    p(f"s_load_dwordx2 s[4:5], s[0:1], {KA_X}")
    p(f"s_load_dwordx2 s[6:7], s[0:1], {KA_WO}")
    p(f"s_load_dwordx2 s[8:9], s[0:1], {KA_WS}")
    p("v_and_b32 v1, 63, v0")
    p("v_lshrrev_b32 v2, 6, v0")
    p("v_and_b32 v3, 15, v1")
    p("v_readfirstlane_b32 s36, v2")
    p("v_lshrrev_b32 v4, 4, v1")
    p("s_and_b32 s37, s2, 7")
    p("s_lshl_b32 s37, s37, 2")
    p("s_bfe_u32 s47, s2, 0x20003")
    p("s_add_u32 s37, s37, s47")
    p("s_lshr_b32 s38, s2, 5")
    p(f"s_mul_i32 s41, s36, {NR*4096}")
    p("v_lshrrev_b32 v5, 3, v1")
    p("v_and_b32 v6, 7, v1")
    p("v_lshlrev_b32 v7, 1, v4")
    p("v_xor_b32 v6, v6, v7")
    p("v_lshlrev_b32 v6, 4, v6")
    p(f"v_lshl_add_u32 v{DWO}, v5, 10, v6")
    for i in range(1, 4): p(f"v_add_u32 v{DWO+i}, {7*1024*i}, v{DWO}")
    p(f"v_lshlrev_b32 v{XV}, 4, v1")
    p("s_waitcnt lgkmcnt(0)")
    p("; MARKA")
    srd(p, 12, 4, 2048*512*2)
    srd(p, 16, 6, 4096*512*2)
    srd(p, 20, 8, 2048*4096*2, WS_OF)
    srd(p, 24, 8, 2048*512*2, WS_X2)
    srd(p, 28, 8, 3072*4, WS_MOD)
    p("s_lshl_b32 s39, s36, 20")
    p("s_lshl_b32 s47, s38, 7")
    p("s_add_u32 s39, s39, s47")
    p("s_lshl_b32 s47, s37, 12")
    p("s_lshl_b32 s48, s36, 22")
    p("s_add_u32 s42, s47, s48")
    def loads(i):
        out = [f"s_add_u32 m0, s41, {(i % NR)*4096}"]
        for g in range(4):
            r = OFR + (i % NR)*16 + g*4
            out.append(I(f"buffer_load_dwordx4 {vr(r,4)}, v{XV}, s[20:23], s42 offen offset:{g*1024}", v=('D', i)))
        for k in range(4):
            out.append(I(f"buffer_load_dwordx4 v{DWO+k}, s[16:19], s39 offen offset:{k*1024} lds", v=('D', i)))
        out.append("s_add_u32 s39, s39, 32768")
        out.append("s_add_u32 s42, s42, 131072")
        return out
    for i in range(NR): p(loads(i))
    p("; MARKD")
    p("v_lshrrev_b32 v5, 2, v0")
    p("v_and_b32 v6, 3, v0")
    p("v_lshlrev_b32 v17, 10, v5")
    p("v_lshl_add_u32 v17, v6, 5, v17")
    p("v_lshlrev_b32 v18, 6, v6")
    p("s_lshl_b32 s48, s37, 16")
    p("s_lshl_b32 s47, s38, 7")
    p("s_add_u32 s48, s48, s47")
    p("s_lshl_b32 s49, s38, 8")
    p("s_add_u32 s49, s49, 4096")
    for k in range(2): p(f"buffer_load_dwordx4 {vr(XX+4*k,4)}, v17, s[12:15], s48 offen offset:{16*k}", v='E')
    for k in range(4): p(f"buffer_load_dwordx4 {vr(GA+4*k,4)}, v18, s[28:31], s49 offen offset:{16*k}", v='E')
    p(f"s_movk_i32 s50, {RS}")
    p("v_mul_lo_u32 v19, v5, s50")
    p("v_lshl_add_u32 v19, v6, 6, v19")
    p("v_lshrrev_b32 v5, 2, v3")
    p("v_lshl_add_u32 v5, v4, 2, v5")
    p("v_bfe_u32 v6, v5, 1, 2")
    p("v_lshlrev_b32 v6, 1, v6")
    p("v_and_b32 v7, 1, v3")
    p("v_lshlrev_b32 v7, 3, v7")
    p("v_lshl_add_u32 v7, v5, 7, v7")
    p("v_add_u32 v7, s41, v7")
    p("v_bfe_u32 v5, v3, 1, 1")
    for nt in range(4):
        p(f"v_add_u32 v{AA+nt}, {2*nt}, v5")
        p(f"v_xor_b32 v{AA+nt}, v{AA+nt}, v6")
        p(f"v_lshl_add_u32 v{AA+nt}, v{AA+nt}, 4, v7")
    def areads(i):
        out = []
        for nt in range(4):
            f = AF[i % 2] + nt*4
            o = (i % NR)*4096
            out.append(I(f"ds_read_b64_tr_b16 {vr(f,2)}, v{AA+nt} offset:{o}", l=('A', i)))
            out.append(I(f"ds_read_b64_tr_b16 {vr(f+2,2)}, v{AA+nt} offset:{o+2048}", l=('A', i)))
        return out
    p(WV({('D', 0)}))
    p("; MARKB")
    p(areads(0))
    for i in range(32):
        if i + 1 < 32: p(WV({('D', i+1)}))
        p(WL({('A', i)}))
        ar_ = areads(i+1) if i + 1 < 32 else []
        k = 0
        for nt in range(4):
            for g in range(4):
                o = ACC + (nt*4 + g)*4
                p(f"{MFMA} {vr(o,4)}, {vr(AF[i%2]+nt*4,4)}, {vr(OFR+(i%NR)*16+g*4,4)}, {'0' if i == 0 else vr(o,4)}")
                if k < len(ar_): p(ar_[k])
                k += 1
        if i + NR < 32: p(loads(i + NR))
    p("; MARKC")
    p("s_barrier")
    p(f"s_mul_i32 s47, s36, {64*RS}")
    p("v_mul_lo_u32 v5, v3, s50")
    p("v_lshl_add_u32 v5, v4, 4, v5")
    p("v_add_u32 v5, s47, v5")
    p.nop(4)
    for nt in range(4):
        for g in range(4):
            o = ACC + (nt*4 + g)*4
            p(f"ds_write_b128 v5, {vr(o,4)} offset:{g*16*RS + nt*64}")
    p("s_waitcnt lgkmcnt(0)")
    p("s_barrier")
    for w in range(4):
        for k in range(4):
            p(f"ds_read_b128 {vr(ACC + w*16 + k*4, 4)}, v19 offset:{w*64*RS + k*16}")
    p("s_waitcnt vmcnt(0)")
    unpack8(p, XX, AF[0]); unpack8(p, XX+4, AF[0]+8)
    p("s_waitcnt lgkmcnt(0)")
    for e in range(16):
        p(f"v_add_f32 v{ACC+e}, v{ACC+e}, v{ACC+16+e}")
        p(f"v_add_f32 v{ACC+32+e}, v{ACC+32+e}, v{ACC+48+e}")
    for e in range(16): p(f"v_add_f32 v{ACC+e}, v{ACC+e}, v{ACC+32+e}")
    rnd_pairs(p, [ACC+e for e in range(16)])
    for e in range(16): p(f"v_mul_f32 v{ACC+e}, v{ACC+e}, v{GA+e}")
    rnd_pairs(p, [ACC+e for e in range(16)])
    for e in range(16): p(f"v_add_f32 v{ACC+e}, v{ACC+e}, v{AF[0]+e}")
    for e in range(8): p(f"v_cvt_pk_bf16_f32 v{XX+e}, v{ACC+2*e}, v{ACC+2*e+1}")
    for k in range(2): p(f"buffer_store_dwordx4 {vr(XX+4*k,4)}, v17, s[24:27], s48 offen offset:{16*k}")
    p.label("K3_END")
    p("s_endpgm")
    p.resolve(a)
    return kernel_desc(name, 240, 64, 240)
```

```python
from asmlib import *
from common import *
from k0 import rnd_bf16, unpack8, rnd_pairs
import math
LOG2E = math.log2(math.e)

K4_LDS = 64
def k4(a, name='k4_kernel'):
    kernel_begin(a, name)
    a("s_cmp_ge_u32 s2, 256")
    a("s_cbranch_scc1 K4_END")
    a(f"s_load_dwordx2 s[4:5], s[0:1], {KA_WR}")
    a(f"s_load_dwordx2 s[6:7], s[0:1], {KA_OUT}")
    a(f"s_load_dwordx2 s[8:9], s[0:1], {KA_WS}")
    a("v_and_b32 v1, 63, v0")
    a("v_lshrrev_b32 v2, 6, v0")
    a("v_lshlrev_b32 v3, 4, v1")
    a("v_lshl_add_u32 v4, v2, 11, v3")
    a("v_lshlrev_b32 v5, 5, v1")
    a("s_lshl_b32 s3, s2, 13")
    a("s_waitcnt lgkmcnt(0)")
    srd(a, 12, 4, 1024)
    srd(a, 16, 6, 2048*512*2)
    srd(a, 20, 8, 2048*512*2, WS_X2)
    srd(a, 24, 8, 2048*512*2, WS_H2)
    srd(a, 28, 8, 0x8000)
    X = [8, 12]
    for r in range(2): a(f"buffer_load_dwordx4 {vr(X[r],4)}, v4, s[20:23], s3 offen offset:{r*1024}")
    SB, CB, GB, WR = 16, 24, 32, 40
    for base, idx in ((SB, 3), (CB, 4), (GB, 5)):
        a(f"s_movk_i32 s34, {idx*2048}")
        for k in range(2): a(f"buffer_load_dwordx4 {vr(base+4*k,4)}, v5, s[28:31], s34 offen offset:{16*k}")
    a(f"buffer_load_dwordx4 v[48:51], v3, s[12:15], 0 offen")
    XF = [56, 64]; D = [72, 80]
    a("s_waitcnt vmcnt(7)")
    for r in range(2): unpack8(a, X[r], XF[r])
    M = [88, 89]; T = [90, 91]; V = [92, 93]; R = [94, 95]
    for r in range(2):
        a(f"v_add_f32 v{M[r]}, v{XF[r]}, v{XF[r]+1}")
        for e in range(2, 8): a(f"v_add_f32 v{M[r]}, v{M[r]}, v{XF[r]+e}")
    allreduce(a, M, T)
    for r in range(2): a(f"v_mul_f32 v{M[r]}, {f32(1/512)}, v{M[r]}")
    for r in range(2):
        for e in range(8): a(f"v_sub_f32 v{D[r]+e}, v{XF[r]+e}, v{M[r]}")
        a(f"v_mul_f32 v{V[r]}, v{D[r]}, v{D[r]}")
        for e in range(1, 8): a(f"v_fmac_f32 v{V[r]}, v{D[r]+e}, v{D[r]+e}")
    allreduce(a, V, T)
    for r in range(2):
        rnd_bf16(a, M[r])
        a(f"v_mul_f32 v{V[r]}, {f32(1/512)}, v{V[r]}")
        rnd_bf16(a, V[r])
        a(f"v_add_f32 v{V[r]}, {f32(EPS)}, v{V[r]}")
        rnd_bf16(a, V[r])
        a(f"v_sqrt_f32 v{V[r]}, v{V[r]}")
        a("s_nop 0")
        rnd_bf16(a, V[r])
        a(f"v_rcp_f32 v{V[r]}, v{V[r]}")
        for e in range(8): a(f"v_sub_f32 v{D[r]+e}, v{XF[r]+e}, v{M[r]}")
        rnd_pairs(a, [D[r]+e for e in range(8)])
        for e in range(8): a(f"v_mul_f32 v{D[r]+e}, v{D[r]+e}, v{V[r]}")
        rnd_pairs(a, [D[r]+e for e in range(8)])
    a("s_waitcnt vmcnt(0)")
    for e in range(8): a(f"v_add_f32 v{CB+e}, 1.0, v{CB+e}")
    rnd_pairs(a, [CB+e for e in range(8)])
    unpack8(a, 48, WR)
    for r in range(2):
        for e in range(8): a(f"v_mul_f32 v{D[r]+e}, v{D[r]+e}, v{CB+e}")
        rnd_pairs(a, [D[r]+e for e in range(8)])
        for e in range(8): a(f"v_add_f32 v{D[r]+e}, v{D[r]+e}, v{SB+e}")
        for e in range(4): a(f"v_cvt_pk_bf16_f32 v{X[r]+e}, v{D[r]+2*e}, v{D[r]+2*e+1}")
        a(f"buffer_store_dwordx4 {vr(X[r],4)}, v4, s[24:27], s3 offen offset:{r*1024}")
        unpack8(a, X[r], D[r])
        a(f"v_mul_f32 v{R[r]}, v{D[r]}, v{WR}")
        for e in range(1, 8): a(f"v_fmac_f32 v{R[r]}, v{D[r]+e}, v{WR+e}")
        for e in range(8): a(f"v_mul_f32 v{D[r]+e}, v{D[r]+e}, v{GB+e}")
        rnd_pairs(a, [D[r]+e for e in range(8)])
        for e in range(8): a(f"v_add_f32 v{D[r]+e}, v{D[r]+e}, v{XF[r]+e}")
        for e in range(4): a(f"v_cvt_pk_bf16_f32 v{96+4*r+e}, v{D[r]+2*e}, v{D[r]+2*e+1}")
        a(f"buffer_store_dwordx4 {vr(96+4*r,4)}, v4, s[16:19], s3 offen offset:{r*1024}")
    allreduce(a, R, T)
    for r in range(2): rnd_bf16(a, R[r])
    a("s_lshl_b32 s34, s2, 3")
    a("v_lshl_add_u32 v6, v2, 1, s34")
    a("v_add_u32 v7, 1, v6")
    a(f"v_cmp_gt_f32 vcc, v{R[1]}, v{R[0]}")
    a("s_nop 1")
    a(f"v_cndmask_b32 v104, v{R[0]}, v{R[1]}, vcc")
    a("v_cndmask_b32 v105, v6, v7, vcc")
    a("v_lshlrev_b32 v6, 3, v2")
    a("ds_write_b64 v6, v[104:105]")
    a("v_mov_b32 v6, 0")
    a("s_waitcnt lgkmcnt(0)")
    a("s_barrier")
    a("v_cmp_eq_u32 vcc, 0, v0")
    a("s_and_saveexec_b64 s[36:37], vcc")
    a("s_cbranch_execz K4_END")
    a("ds_read_b128 v[104:107], v6")
    a("ds_read_b128 v[108:111], v6 offset:16")
    a("s_waitcnt lgkmcnt(0)")
    for k in (106, 108, 110):
        a(f"v_cmp_gt_f32 vcc, v{k}, v104")
        a("s_nop 1")
        a(f"v_cndmask_b32 v104, v104, v{k}, vcc")
        a(f"v_cndmask_b32 v105, v105, v{k+1}, vcc")
    a(f"s_add_u32 s34, s34, {WS_CAND}")
    a("buffer_store_dwordx2 v[104:105], v6, s[28:31], s34 offen")
    a.label("K4_END")
    a("s_endpgm")
    return kernel_desc(name, 112, 48, 112)

def argmax_block(a, lds_off, srdn):
    a("v_lshlrev_b32 v60, 3, v0")
    a(f"s_movk_i32 s40, {WS_CAND}")
    a("v_and_b32 v60, 0x7ff, v60")
    a(f"buffer_load_dwordx2 v[62:63], v60, s[{srdn}:{srdn+3}], s40 offen")
    a("s_waitcnt vmcnt(0)")
    a("v_mov_b32 v64, v62")
    allreduce(a, [64], [65], op='v_max_f32')
    a("v_cmp_eq_f32 vcc, v62, v64")
    a("v_mov_b32 v66, 0x7fffffff")
    a("s_nop 0")
    a("v_cndmask_b32 v65, v66, v63, vcc")
    allreduce(a, [65], [66], op='v_min_u32')
    a("v_lshrrev_b32 v66, 6, v0")
    a("v_lshlrev_b32 v66, 3, v66")
    a(f"ds_write_b64 v66, v[64:65] offset:{lds_off}")
    a("v_mov_b32 v66, 0")
    a("s_waitcnt lgkmcnt(0)")
    a("s_barrier")
    a(f"ds_read_b128 v[60:63], v66 offset:{lds_off}")
    a(f"ds_read_b128 v[64:67], v66 offset:{lds_off+16}")
    a("s_waitcnt lgkmcnt(0)")
    for k in (62, 64, 66):
        a(f"v_cmp_gt_f32 vcc, v{k}, v60")
        a("s_nop 1")
        a(f"v_cndmask_b32 v60, v60, v{k}, vcc")
        a(f"v_cndmask_b32 v61, v61, v{k+1}, vcc")
    a("v_and_b32 v61, 0x7ff, v61")
    a("s_nop 0")
    a("v_readfirstlane_b32 s40, v61")
    a("v_readfirstlane_b32 s41, v60")

K5_GRID = 56
K5_LDS = 40960
def k5(a, name='k5_kernel'):
    kernel_begin(a, name)
    a(f"s_cmp_ge_u32 s2, {K5_GRID}")
    a("s_cbranch_scc1 K5_END")
    a(f"s_load_dwordx4 s[4:7], s[0:1], {KA_WG}")
    a(f"s_load_dwordx2 s[8:9], s[0:1], {KA_WD}")
    a(f"s_load_dwordx2 s[10:11], s[0:1], {KA_WS}")
    a("v_and_b32 v1, 3, v0")
    a("v_lshrrev_b32 v2, 2, v0")
    a("s_movk_i32 s34, 3584")
    a("v_mul_lo_u32 v3, v2, s34")
    a("v_lshl_add_u32 v3, v1, 4, v3")
    a("s_lshl_b32 s35, s2, 6")
    a("v_lshlrev_b32 v4, 4, v0")
    a("s_lshl_b32 s36, s2, 15")
    a("s_waitcnt lgkmcnt(0)")
    srd(a, 12, 4, 512*1792*2); srd(a, 16, 6, 512*1792*2); srd(a, 20, 8, 1792*512*2)
    srd(a, 24, 10, 0x8000 + 56*2048); srd(a, 28, 10, 2048*512*2, WS_H2)
    for i in range(4):
        a(f"buffer_load_dwordx4 {vr(8+4*i,4)}, v3, s[12:15], s35 offen")
        a(f"buffer_load_dwordx4 {vr(24+4*i,4)}, v3, s[16:19], s35 offen")
        if i < 3: a(f"s_add_u32 s35, s35, {128*3584}")
    for i in range(4):
        a(f"buffer_load_dwordx4 {vr(40+4*i,4)}, v4, s[20:23], s36 offen")
        if i < 3: a("s_add_u32 s36, s36, 8192")
    argmax_block(a, 0, 24)
    a("s_lshl_b32 s37, s40, 10")
    a("v_lshlrev_b32 v5, 1, v2")
    a("s_nop 3")
    for i in range(4): a(f"buffer_load_ushort v{56+i}, v5, s[28:31], s37 offen offset:{i*256}")
    a("s_waitcnt vmcnt(0)")
    for i in range(4): a(f"v_lshlrev_b32 v{56+i}, 16, v{56+i}")
    for m, base in ((0, 8), (1, 24)):
        for i in range(4):
            unpack8(a, base+4*i, 60)
            for e in range(8):
                if i == 0: a(f"v_mul_f32 v{72+8*m+e}, v{56+i}, v{60+e}")
                else: a(f"v_fmac_f32 v{72+8*m+e}, v{56+i}, v{60+e}")
    allreduce(a, list(range(72, 88)), list(range(88, 104)), steps=(16, 32))
    for r in range(72, 88): a(f"v_add_f32_dpp v{r}, v{r}, v{r} row_ror:8 row_mask:0xf bank_mask:0xf")
    for r in range(72, 88): a(f"v_add_f32_dpp v{r}, v{r}, v{r} row_ror:4 row_mask:0xf bank_mask:0xf")
    a("v_lshrrev_b32 v5, 6, v0")
    a("v_lshlrev_b32 v5, 8, v5")
    a("v_lshl_add_u32 v5, v1, 5, v5")
    a("ds_write_b128 v5, v[72:75] offset:64"); a("ds_write_b128 v5, v[76:79] offset:80")
    a("ds_write_b128 v5, v[80:83] offset:192"); a("ds_write_b128 v5, v[84:87] offset:208")
    a("v_and_b32 v6, 31, v0")
    a("v_lshlrev_b32 v6, 2, v6")
    a("s_waitcnt lgkmcnt(0)")
    a("s_barrier")
    for w in range(8):
        a(f"ds_read_b32 v{60+w}, v6 offset:{64+w*256}")
        a(f"ds_read_b32 v{72+w}, v6 offset:{64+w*256+128}")
        if w == 3: a("s_waitcnt lgkmcnt(0)")
    a("s_waitcnt lgkmcnt(0)")
    for w in range(1, 8):
        a(f"v_add_f32 v60, v60, v{60+w}"); a(f"v_add_f32 v72, v72, v{72+w}")
    rnd_bf16(a, 60); rnd_bf16(a, 72)
    a(f"v_mul_f32 v61, {f32(-LOG2E)}, v60")
    a("v_exp_f32 v61, v61"); a("s_nop 0")
    a("v_add_f32 v61, 1.0, v61")
    a("v_rcp_f32 v61, v61"); a("s_nop 0")
    a("v_mul_f32 v60, v60, v61")
    rnd_bf16(a, 60)
    a("v_mul_f32 v60, v60, v72")
    rnd_bf16(a, 60)
    a("v_lshrrev_b32 v5, 6, v0")
    a("s_nop 0")
    a("v_readfirstlane_b32 s38, v5")
    a("s_nop 3")
    for i in range(4):
        a(f"v_readlane_b32 s{44+i}, v60, s38")
        if i < 3: a("s_add_u32 s38, s38, 8"); a("s_nop 3")
    a("s_nop 1")
    for i in range(4):
        unpack8(a, 40+4*i, 72)
        for e in range(8):
            if i == 0: a(f"v_mul_f32 v{80+e}, s{44+i}, v{72+e}")
            else: a(f"v_fmac_f32 v{80+e}, s{44+i}, v{72+e}")
    a("v_lshlrev_b32 v5, 5, v0")
    a("ds_write_b128 v5, v[80:83] offset:4096"); a("ds_write_b128 v5, v[84:87] offset:4112")
    a("v_lshlrev_b32 v6, 2, v0")
    a("s_waitcnt lgkmcnt(0)")
    a("s_barrier")
    for w in range(8): a(f"ds_read_b32 v{60+w}, v6 offset:{4096+w*2048}")
    a("s_waitcnt lgkmcnt(0)")
    for w in range(1, 8): a(f"v_add_f32 v60, v60, v{60+w}")
    a("s_lshl_b32 s38, s2, 11")
    a(f"s_add_u32 s38, s38, {WS_PART}")
    a("buffer_store_dword v60, v6, s[24:27], s38 offen")
    a.label("K5_END")
    a("s_endpgm")
    return kernel_desc(name, 104, 56, 104)

K6_LDS = 64
def k6(a, name='k6_kernel'):
    kernel_begin(a, name)
    a("s_cmp_ge_u32 s2, 1")
    a("s_cbranch_scc1 K6_END")
    a(f"s_load_dwordx2 s[6:7], s[0:1], {KA_OUT}")
    a(f"s_load_dwordx2 s[10:11], s[0:1], {KA_WS}")
    a("v_lshlrev_b32 v1, 2, v0")
    a("v_lshlrev_b32 v2, 1, v0")
    a("s_waitcnt lgkmcnt(0)")
    srd(a, 16, 6, 2048*512*2); srd(a, 20, 10, 2048*512*2, WS_X2)
    srd(a, 24, 10, 0x8000 + 56*2048); srd(a, 28, 10, 2048*512*2, WS_H2)
    a(f"s_mov_b32 s34, {WS_PART}")
    for i in range(56):
        a(f"buffer_load_dword v{72+i}, v1, s[24:27], s34 offen offset:{(i%2)*2048}")
        if i % 2 == 1: a("s_add_u32 s34, s34, 4096")
    a(f"s_movk_i32 s34, {5*2048}")
    a("buffer_load_dword v3, v1, s[24:27], s34 offen")
    argmax_block(a, 0, 24)
    a("s_lshl_b32 s37, s40, 10")
    a("s_nop 4")
    a("buffer_load_ushort v4, v2, s[28:31], s37 offen")
    a("buffer_load_ushort v5, v2, s[20:23], s37 offen")
    for i in range(1, 56): a(f"v_add_f32 v72, v72, v{72+i}")
    rnd_bf16(a, 72)
    a("v_mov_b32 v6, s41")
    a(f"v_mul_f32 v6, {f32(-LOG2E)}, v6")
    a("v_exp_f32 v6, v6"); a("s_nop 0")
    a("v_add_f32 v6, 1.0, v6")
    a("v_rcp_f32 v6, v6"); a("s_nop 0")
    rnd_bf16(a, 6)
    a("v_mul_f32 v72, v72, v6")
    rnd_bf16(a, 72)
    a("s_waitcnt vmcnt(0)")
    a("v_lshlrev_b32 v4, 16, v4"); a("v_lshlrev_b32 v5, 16, v5")
    a("v_add_f32 v72, v72, v4")
    rnd_bf16(a, 72)
    a("v_mul_f32 v72, v72, v3")
    rnd_bf16(a, 72)
    a("v_add_f32 v72, v72, v5")
    a("v_cvt_pk_bf16_f32 v72, v72, v72")
    a("buffer_store_short v72, v2, s[16:19], s37 offen")
    a.label("K6_END")
    a("s_endpgm")
    return kernel_desc(name, 128, 48, 128)
```

```python
from asmlib import *
from common import *
from sched import *
from k0 import rnd_bf16, unpack8, rnd_pairs
import math
LOG2E = math.log2(math.e)
MFMA = "v_mfma_f32_16x16x32_bf16"
NS, LB, NBR = 6, 16, 17
KT_LDS = NS*16384
SPIN = 1 << 18

def unpack4(p, src, dst):
    for i in range(2):
        p(f"v_lshlrev_b32 v{dst+2*i}, 16, v{src+i}")
        p(f"v_and_b32 v{dst+2*i+1}, 0xffff0000, v{src+i}")

def red_8_16_32(p, regs, tmps, op='v_add_f32'):
    n = len(regs)
    p.nop(2)
    for r in regs: p(f"{op}_dpp v{r}, v{r}, v{r} row_ror:8 row_mask:0xf bank_mask:0xf")
    allreduce(p, regs, tmps, op=op, steps=(16, 32))

def wait_flags(p, lab, wave_s, voff, nd, vt, srdn, soff, execmask=None):
    p(f"s_cmp_lg_u32 s{wave_s}, 0")
    p(f"s_cbranch_scc1 {lab}_done")
    p(f"s_mov_b32 s62, {SPIN}")
    if execmask: p(f"s_mov_b64 exec, {execmask}")
    p.label(f"{lab}_loop")
    sfx = {1: 'dword', 2: 'dwordx2', 4: 'dwordx4'}[nd]
    p(f"buffer_load_{sfx} {vr(vt,nd)}, v{voff}, s[{srdn}:{srdn+3}], {soff} offen sc1")
    p("s_waitcnt vmcnt(0)")
    m = vt
    if nd == 2: p(f"v_min_u32 v{vt+nd}, v{vt}, v{vt+1}"); m = vt + nd
    if nd == 4:
        p(f"v_min_u32 v{vt+nd}, v{vt}, v{vt+1}"); p(f"v_min3_u32 v{vt+nd}, v{vt+nd}, v{vt+2}, v{vt+3}"); m = vt + nd
    p(f"v_cmp_eq_u32 vcc, 0, v{m}")
    p("s_sub_u32 s62, s62, 1")
    p(f"s_cbranch_scc1 {lab}_out")
    p(f"s_cbranch_vccz {lab}_out")
    p("s_sleep 1")
    p(f"s_branch {lab}_loop")
    p.label(f"{lab}_out")
    if execmask: p("s_mov_b64 exec, -1")
    p.label(f"{lab}_done")

def set_flag(p, lab, wave_s, vval, voff, srdn, soff, execmask):
    p("s_waitcnt vmcnt(0)")
    p("s_barrier")
    p(f"s_cmp_lg_u32 s{wave_s}, 0")
    p(f"s_cbranch_scc1 {lab}_sig")
    p(f"s_mov_b64 exec, {execmask}")
    p(f"buffer_store_dword v{vval}, v{voff}, s[{srdn}:{srdn+3}], {soff} offen sc1")
    p("s_mov_b64 exec, -1")
    p.label(f"{lab}_sig")

def kt(a, name='kt_kernel'):
    kernel_begin(a, name)
    p = Prog()
    AA, DWO, XV = 8, 12, 16
    VP, VX, VM = 17, 18, 19
    ACC = 20
    AF = [52, 68, 84]
    BR = 100
    X, WR, GA = BR, BR+8, BR+16
    SB, CB = BR+32, BR+48
    GB, WG = BR+64, BR+80
    WU, WD = BR+96, BR+112
    T = 240
    p("s_cmp_ge_u32 s2, 256")
    p("s_cbranch_scc1 KT_END")
    p(f"s_load_dwordx2 s[4:5], s[0:1], {KA_X}")
    p(f"s_load_dwordx2 s[6:7], s[0:1], {KA_WO}")
    p(f"s_load_dwordx4 s[64:67], s[0:1], {KA_WR}")
    p(f"s_load_dwordx4 s[68:71], s[0:1], {KA_WU}")
    p(f"s_load_dwordx4 s[72:75], s[0:1], {KA_OUT}")
    p(f"s_load_dwordx2 s[8:9], s[0:1], {KA_WS}")
    p("v_and_b32 v1, 63, v0")
    p("v_lshrrev_b32 v2, 6, v0")
    p("v_and_b32 v3, 15, v1")
    p("v_readfirstlane_b32 s36, v2")
    p("v_lshrrev_b32 v4, 4, v1")
    p("s_bfe_u32 s35, s2, 0x10002")
    p("s_and_b32 s37, s2, 3")
    p("s_lshl_b32 s37, s37, 2")
    p("s_lshr_b32 s47, s2, 6")
    p("s_add_u32 s37, s37, s47")
    p("s_bfe_u32 s38, s2, 0x30003")
    p("s_lshl_b32 s41, s36, 12")
    p("v_lshrrev_b32 v5, 3, v1")
    p("v_and_b32 v6, 7, v1")
    p("v_lshlrev_b32 v7, 1, v4")
    p("v_xor_b32 v6, v6, v7")
    p("v_lshlrev_b32 v6, 4, v6")
    p(f"v_lshl_add_u32 v{DWO}, v5, 10, v6")
    for i in range(1, 4): p(f"v_add_u32 v{DWO+i}, {7*1024*i}, v{DWO}")
    p(f"v_lshlrev_b32 v{XV}, 4, v1")
    p("s_lshl_b32 s39, s36, 15")
    p("s_lshl_b32 s47, s38, 7")
    p("s_add_u32 s39, s39, s47")
    p("s_lshl_b32 s42, s37, 13")
    p("s_lshl_b32 s47, s36, 11")
    p("s_add_u32 s42, s42, s47")
    p("s_lshl_b32 s46, s35, 21")
    p("s_lshl_b32 s47, s35, 23")
    p(f"s_add_u32 s47, s47, {WS_OF}")
    p("s_waitcnt lgkmcnt(0)")
    p("s_add_u32 s16, s6, s46"); p("s_addc_u32 s17, s7, 0"); p(f"s_mov_b32 s18, {2048*512*2}"); p("s_mov_b32 s19, 0x20000")
    p("s_add_u32 s20, s8, s47"); p("s_addc_u32 s21, s9, 0"); p(f"s_mov_b32 s22, {2048*2048*2}"); p("s_mov_b32 s23, 0x20000")
    def bload(i):
        r = BR + (i % NBR)*8
        return [I(f"buffer_load_dwordx4 {vr(r+4*g,4)}, v{XV}, s[20:23], s42 offen offset:{g*1024}", v=('B', i)) for g in range(2)]
    def wdma(st, k):
        return I(f"buffer_load_dwordx4 v{DWO+k}, s[16:19], s39 offen offset:{k*1024} lds", v=('W', st))
    for st in range(NS - 1):
        p(f"s_add_u32 m0, s41, {st*16384}")
        for k in range(4):
            if st*4 + k < LB: p(bload(st*4 + k)); p("s_add_u32 s42, s42, 131072")
            else: p("s_nop 0")
            p(wdma(st, k))
        p("s_add_u32 s39, s39, 131072")
    srd(p, 12, 4, 2048*512*2)
    srd(p, 24, 8, 8 << 20, WS_PART1)
    srd(p, 28, 8, 3072*4, WS_MOD)
    srd(p, 76, 64, 1024)
    p(f"s_cmp_lt_u32 s2, {NFFN}")
    p(f"s_cselect_b32 s47, {512*1792*2}, 0")
    for d, b in ((80, 66), (84, 68), (88, 70)):
        p(f"s_mov_b32 s{d}, s{b}"); p(f"s_mov_b32 s{d+1}, s{b+1}"); p(f"s_mov_b32 s{d+2}, s47"); p(f"s_mov_b32 s{d+3}, 0x20000")
    srd(p, 64, 72, 2048*512*2)
    srd(p, 68, 74, 256)
    srd(p, 72, 8, WS_PART2 + NFFN*2048)
    p("v_lshrrev_b32 v5, 2, v3")
    p("v_lshl_add_u32 v5, v4, 2, v5")
    p("v_bfe_u32 v6, v5, 1, 2")
    p("v_lshlrev_b32 v6, 1, v6")
    p("v_and_b32 v7, 1, v3")
    p("v_lshlrev_b32 v7, 3, v7")
    p("v_lshl_add_u32 v7, v5, 7, v7")
    p("v_bfe_u32 v5, v3, 1, 1")
    for nt in range(4):
        p(f"v_add_u32 v{AA+nt}, {2*nt}, v5")
        p(f"v_xor_b32 v{AA+nt}, v{AA+nt}, v6")
        p(f"v_lshl_add_u32 v{AA+nt}, v{AA+nt}, 4, v7")
    p("v_lshrrev_b32 v5, 5, v1")
    p("v_bfe_u32 v6, v1, 3, 2")
    p("v_and_b32 v7, 7, v1")
    p(f"v_lshlrev_b32 v{VP}, 10, v5")
    p(f"v_lshl_add_u32 v{VP}, v6, 8, v{VP}")
    p(f"v_lshl_add_u32 v{VP}, v7, 4, v{VP}")
    p("v_lshl_add_u32 v5, v5, 2, v6")
    p(f"v_lshlrev_b32 v{VM}, 4, v5")
    p(f"v_lshl_add_u32 v{VM}, v2, 9, v{VM}")
    p(f"v_lshrrev_b32 v{VX}, 1, v{VM}")
    p(f"v_lshl_add_u32 v{VX}, v7, 10, v{VX}")
    p("s_lshl_b32 s43, s35, 3")
    p("s_add_u32 s43, s43, s38")
    p("s_lshl_b32 s44, s37, 4")
    p("s_add_u32 s44, s44, s43")
    p("s_lshl_b32 s45, s44, 13")
    def cm(k): return (k // 2)*128 + (k % 2)*64
    def areads(i):
        st, k = i // 4, i % 4
        res = []
        for nt in range(4):
            f = AF[i % 3] + nt*4
            o = (st % NS)*16384 + k*4096
            av = AA + nt
            if o >= 65536: av = T + 4 + nt; o -= 65536
            res.append(I(f"ds_read_b64_tr_b16 {vr(f,2)}, v{av} offset:{o}", l=('A', i)))
            res.append(I(f"ds_read_b64_tr_b16 {vr(f+2,2)}, v{av} offset:{o+2048}", l=('A', i)))
        return res
    for nt in range(4): p(f"v_add_u32 v{T+4+nt}, 0x10000, v{AA+nt}")
    p("; MARKA")
    p(WV({('W', 0)}))
    p("s_barrier")
    p(areads(0)); p(areads(1))
    for i in range(64):
        st, k = i // 4, i % 4
        pre = []
        if k == 2 and st + 1 < 16: pre += [WV({('W', st+1), ('B', i)}), "s_barrier"]
        else: pre.append(WV({('B', i)}))
        pre.append(WL({('A', i)}))
        p(pre)
        nx = areads(i+2) if i + 2 < 64 else []
        sp, kk = (i - 2) // 4, (i - 2) % 4
        dst = sp + NS - 1
        vm = []
        if i + LB < 64: vm += bload(i + LB)
        dm = []
        if i >= 2 and dst < 16: dm = [wdma(dst, kk)]
        m = 0
        for nt in range(4):
            for g in range(2):
                o = ACC + (g*4 + nt)*4
                p(f"{MFMA} {vr(o,4)}, {vr(AF[i%3]+nt*4,4)}, {vr(BR+(i%NBR)*8+g*4,4)}, {'0' if i == 0 else vr(o,4)}")
                if m == 0 and dm and kk == 0: p(f"s_add_u32 m0, s41, {(dst % NS)*16384}")
                if m < 4 and nx: p(nx[2*m]); p(nx[2*m+1])
                if m == 4 and vm: p(vm[0])
                if m == 5 and vm: p(vm[1])
                if m == 6 and vm: p("s_add_u32 s42, s42, 131072")
                if m == 6 and dm: p(dm[0])
                if m == 7 and dm and kk == 3: p("s_add_u32 s39, s39, 131072")
                m += 1
    p("; MARKB")
    import sys
    if 'gemmonly' in sys.argv: p("s_endpgm")
    p("s_lshl_b32 s46, s37, 1"); p("s_add_u32 s46, s46, s35"); p("s_lshl_b32 s46, s46, 3"); p("s_add_u32 s46, s46, s38")
    p("s_lshl_b32 s46, s46, 15"); p("s_lshl_b32 s47, s36, 13"); p("s_add_u32 s46, s46, s47"); p("s_add_u32 s47, s46, 4096")
    p.nop(2)
    for g in range(2):
        for nt in range(4):
            p(f"buffer_store_dwordx4 {vr(ACC+(g*4+nt)*4,4)}, v{XV}, s[24:27], s{46+g} offen offset:{nt*1024} sc1")
    p("s_lshl_b32 s49, s37, 7")
    p(f"s_add_u32 s49, s49, {WS_FLAG + FL_F1}")
    p("s_lshl_b32 s48, s43, 2")
    p("v_mov_b32 v4, 1")
    p("v_mov_b32 v5, s48")
    set_flag(p, "KT1", 36, 4, 5, 72, "s49", 1)
    def vec(base, idx):
        p(f"s_movk_i32 s46, {idx*2048}")
        for k in range(4): p(f"buffer_load_dwordx4 {vr(base+4*k,4)}, v{VM}, s[28:31], s46 offen offset:{2*cm(k)}")
    for k in range(4): p(f"buffer_load_dwordx2 {vr(X+2*k,2)}, v{VX}, s[12:15], s45 offen offset:{cm(k)}")
    p(f"v_lshrrev_b32 v5, 1, v{VM}")
    for k in range(4): p(f"buffer_load_dwordx2 {vr(WR+2*k,2)}, v5, s[76:79], 0 offen offset:{cm(k)}")
    vec(CB, 4); vec(GA, 2); vec(SB, 3); vec(GB, 5)
    p("s_and_b32 s63, s2, 7"); p("s_mul_i32 s63, s63, 14"); p("s_lshr_b32 s46, s2, 3"); p("s_add_u32 s63, s63, s46")
    p("v_lshrrev_b32 v5, 1, v0"); p("s_movk_i32 s46, 14336"); p("v_mul_lo_u32 v5, v5, s46"); p("v_and_b32 v6, 1, v0")
    p("v_lshl_add_u32 v5, v6, 4, v5"); p("s_lshl_b32 s46, s63, 5"); p("s_add_u32 s47, s46, 7168")
    for base, sn in ((WG, 80), (WU, 84)):
        for i in range(4): p(f"buffer_load_dwordx4 {vr(base+4*i,4)}, v5, s[{sn}:{sn+3}], s{46+i//2} offen offset:{(i % 2)*3584}")
    p("s_lshl_b32 s46, s63, 14"); p("s_add_u32 s46, s46, s41")
    for i in range(4): p(f"buffer_load_dwordx4 {vr(WD+4*i,4)}, v{XV}, s[88:91], s46 offen offset:{i*1024}")
    p("v_lshlrev_b32 v6, 2, v3")
    p("s_waitcnt vmcnt(24)")
    for k in range(4): unpack4(p, X+2*k, AF[0]+4*k)
    for k in range(4): unpack4(p, WR+2*k, AF[1]+4*k)
    for e in range(16): p(f"v_add_f32 v{CB+e}, 1.0, v{CB+e}")
    rnd_pairs(p, [CB+e for e in range(16)])
    wait_flags(p, "KT1", 36, 6, 1, 4, 72, "s49")
    p("s_barrier")
    p("s_lshl_b32 s46, s37, 19"); p("s_lshr_b32 s47, s43, 1"); p("s_lshl_b32 s47, s47, 12"); p("s_add_u32 s46, s46, s47")
    p("s_and_b32 s47, s43, 1"); p("s_lshl_b32 s47, s47, 7"); p("s_add_u32 s46, s46, s47")
    p("s_lshl_b32 s47, s36, 16"); p("s_add_u32 s46, s46, s47")
    for khh in range(2):
        for c in range(2):
            p(f"s_add_u32 s47, s46, {khh*262144 + c*32768}")
            for m in range(2):
                p(f"buffer_load_dwordx4 {vr(ACC+khh*16+(c*2+m)*4,4)}, v{VP}, s[24:27], s47 offen offset:{m*2048} sc1")
    p("v_and_b32 v7, 7, v1")
    p("v_lshlrev_b32 v5, 2, v7")
    p("v_lshl_add_u32 v6, v2, 5, v5")
    p("s_waitcnt vmcnt(0)")
    p("; MARKC")
    R16 = [ACC+e for e in range(16)]
    D16 = [ACC+16+e for e in range(16)]
    for e in range(16): p(f"v_add_f32 v{ACC+e}, v{ACC+e}, v{ACC+16+e}")
    rnd_pairs(p, R16)
    for e in range(16): p(f"v_mul_f32 v{ACC+e}, v{ACC+e}, v{GA+e}")
    rnd_pairs(p, R16)
    for e in range(16): p(f"v_add_f32 v{ACC+e}, v{ACC+e}, v{AF[0]+e}")
    for e in range(8): p(f"v_cvt_pk_bf16_f32 v{X+e}, v{ACC+2*e}, v{ACC+2*e+1}")
    for k in range(4): unpack4(p, X+2*k, ACC+4*k)
    p(f"v_add_f32 v{T}, v{ACC}, v{ACC+1}")
    p(f"v_mul_f32 v{T+1}, v{ACC}, v{ACC}")
    for e in range(2, 16): p(f"v_add_f32 v{T}, v{T}, v{ACC+e}")
    for e in range(1, 16): p(f"v_fmac_f32 v{T+1}, v{ACC+e}, v{ACC+e}")
    red_8_16_32(p, [T, T+1], [T+2, T+3])
    p(f"ds_write_b32 v6, v{T}")
    p(f"ds_write_b32 v6, v{T+1} offset:128")
    p("s_waitcnt lgkmcnt(0)")
    p("s_barrier")
    for w in range(4):
        p(f"ds_read_b32 v{T+w}, v5 offset:{w*32}")
        p(f"ds_read_b32 v{T+4+w}, v5 offset:{128+w*32}")
    p("s_waitcnt lgkmcnt(0)")
    p(f"v_add_f32 v{T}, v{T}, v{T+1}"); p(f"v_add_f32 v{T+2}, v{T+2}, v{T+3}")
    p(f"v_add_f32 v{T+4}, v{T+4}, v{T+5}"); p(f"v_add_f32 v{T+6}, v{T+6}, v{T+7}")
    p(f"v_add_f32 v{T}, v{T}, v{T+2}"); p(f"v_add_f32 v{T+4}, v{T+4}, v{T+6}")
    p(f"v_mul_f32 v{T}, {f32(1/512)}, v{T}")
    p(f"v_mul_f32 v{T+4}, {f32(1/512)}, v{T+4}")
    p(f"v_fma_f32 v{T+4}, -v{T}, v{T}, v{T+4}")
    p(f"v_max_f32 v{T+4}, 0, v{T+4}")
    rnd_bf16(p, T); rnd_bf16(p, T+4)
    p(f"v_add_f32 v{T+4}, {f32(EPS)}, v{T+4}")
    rnd_bf16(p, T+4)
    p(f"v_sqrt_f32 v{T+4}, v{T+4}")
    for e in range(16): p(f"v_sub_f32 v{ACC+16+e}, v{ACC+e}, v{T}")
    rnd_bf16(p, T+4)
    p(f"v_rcp_f32 v{T+4}, v{T+4}")
    rnd_pairs(p, D16)
    for e in range(16): p(f"v_mul_f32 v{ACC+16+e}, v{ACC+16+e}, v{T+4}")
    rnd_pairs(p, D16)
    for e in range(16): p(f"v_mul_f32 v{ACC+16+e}, v{ACC+16+e}, v{CB+e}")
    rnd_pairs(p, D16)
    for e in range(16): p(f"v_add_f32 v{ACC+16+e}, v{ACC+16+e}, v{SB+e}")
    H2P = WR
    for e in range(8): p(f"v_cvt_pk_bf16_f32 v{H2P+e}, v{ACC+16+2*e}, v{ACC+16+2*e+1}")
    for k in range(4): unpack4(p, H2P+2*k, ACC+16+4*k)
    p(f"v_mul_f32 v{T}, v{ACC+16}, v{AF[1]}")
    for e in range(1, 16): p(f"v_fmac_f32 v{T}, v{ACC+16+e}, v{AF[1]+e}")
    red_8_16_32(p, [T], [T+2])
    p(f"ds_write_b32 v6, v{T} offset:256")
    for e in range(16): p(f"v_mul_f32 v{ACC+16+e}, v{ACC+16+e}, v{GB+e}")
    rnd_pairs(p, D16)
    for e in range(16): p(f"v_add_f32 v{ACC+16+e}, v{ACC+16+e}, v{ACC+e}")
    OUTP = GA
    for e in range(8): p(f"v_cvt_pk_bf16_f32 v{OUTP+e}, v{ACC+16+2*e}, v{ACC+16+2*e+1}")
    p("s_waitcnt lgkmcnt(0)")
    p("s_barrier")
    for w in range(4): p(f"ds_read_b32 v{T+w}, v5 offset:{256+w*32}")
    p("s_lshl_b32 s46, s44, 3")
    p(f"s_sub_u32 s46, {2047 + 0x8000}, s46")
    p(f"v_sub_u32 v{T+5}, s46, v7")
    p("s_waitcnt lgkmcnt(0)")
    p(f"v_add_f32 v{T}, v{T}, v{T+1}"); p(f"v_add_f32 v{T+2}, v{T+2}, v{T+3}")
    p(f"v_add_f32 v{T}, v{T}, v{T+2}")
    rnd_bf16(p, T)
    p(f"v_ashrrev_i32 v{T+1}, 31, v{T}")
    p(f"v_or_b32 v{T+1}, 0x80000000, v{T+1}")
    p(f"v_xor_b32 v{T}, v{T}, v{T+1}")
    p(f"v_and_b32 v{T}, 0xffff0000, v{T}")
    p(f"v_or_b32 v{T}, v{T}, v{T+5}")
    p(f"v_mov_b32 v{T+1}, v{T}")
    allreduce(p, [T+1], [T+2], op='v_max_u32', steps=(1, 2, 4))
    p(f"v_cmp_ne_u32 vcc, v{T}, v{T+1}")
    p("s_mov_b64 s[52:53], vcc")
    p("s_not_b64 exec, s[52:53]")
    p(f"v_lshrrev_b32 v{T+2}, 1, v{VM}")
    p("s_lshl_b32 s46, s44, 11")
    p(f"s_add_u32 s46, s46, {WS_CROW}")
    for k in range(4): p(f"buffer_store_dwordx2 {vr(H2P+2*k,2)}, v{T+2}, s[72:75], s46 offen offset:{cm(k)} sc1")
    for k in range(4): p(f"buffer_store_dwordx2 {vr(X+2*k,2)}, v{T+2}, s[72:75], s46 offen offset:{1024+cm(k)} sc1")
    for k in range(4): p(f"buffer_store_dwordx2 {vr(OUTP+2*k,2)}, v{VX}, s[64:67], s45 offen offset:{cm(k)} sc1")
    p("s_mov_b64 exec, -1")
    p("v_lshlrev_b32 v5, 10, v1")
    p("s_lshl_b32 s46, s44, 2")
    p(f"s_add_u32 s46, s46, {WS_FLAG + FL_KEYS}")
    set_flag(p, "KT2", 36, T+1, 5, 72, "s46", 0xff)
    p("s_mov_b64 exec, s[52:53]")
    for k in range(4): p(f"buffer_store_dwordx2 {vr(OUTP+2*k,2)}, v{VX}, s[64:67], s45 offen offset:{cm(k)}")
    p("s_mov_b64 exec, -1")
    p("; MARKD")
    p(f"s_cmp_lt_u32 s2, {NFFN}")
    p("s_cbranch_scc1 KT_go")
    p("s_cmp_lt_u32 s2, 240")
    p("s_cbranch_scc1 KT_END")
    p.label("KT_go")
    p("s_and_b32 s46, s2, 7")
    p("s_lshl_b32 s46, s46, 10")
    p(f"s_add_u32 s46, s46, {WS_FLAG + FL_KEYS}")
    wait_flags(p, "KT2", 36, XV, 4, T+8, 72, "s46")
    p("s_cmp_lg_u32 s36, 0")
    p("s_cbranch_scc1 KT2_b")
    p(f"v_max_u32 v{T+8}, v{T+8}, v{T+9}")
    p(f"v_max3_u32 v{T+8}, v{T+8}, v{T+10}, v{T+11}")
    allreduce(p, [T+8], [T+9], op='v_max_u32')
    p("v_mov_b32 v6, 0")
    p(f"ds_write_b32 v6, v{T+8} offset:512")
    p("s_waitcnt lgkmcnt(0)")
    p.label("KT2_b")
    p("s_barrier")
    p("v_mov_b32 v6, 0")
    p("ds_read_b32 v4, v6 offset:512")
    p("s_waitcnt lgkmcnt(0)")
    p("v_readfirstlane_b32 s51, v4")
    p("s_and_b32 s54, s51, 0x7ff")
    p("s_sub_u32 s54, 2047, s54")
    p("s_lshr_b32 s55, s54, 3")
    p("s_lshl_b32 s55, s55, 11")
    p(f"s_add_u32 s55, s55, {WS_CROW}")
    p("; MARKE")
    p(f"s_cmp_ge_u32 s2, {NFFN}")
    p("s_cbranch_scc1 KT_FIN")
    p("v_lshrrev_b32 v5, 1, v0")
    p("v_lshlrev_b32 v5, 3, v5")
    p(f"buffer_load_dwordx2 {vr(T+6,2)}, v5, s[72:75], s55 offen sc1")
    p("s_waitcnt vmcnt(0)")
    unpack4(p, T+6, T)
    G8 = ACC
    for mm, base in ((0, WG), (1, WU)):
        for i in range(4):
            unpack8(p, base+4*i, ACC+16)
            for e in range(8):
                if i == 0: p(f"v_mul_f32 v{G8+8*mm+e}, v{T+i}, v{ACC+16+e}")
                else: p(f"v_fmac_f32 v{G8+8*mm+e}, v{T+i}, v{ACC+16+e}")
    for ctl in ('quad_perm:[2,3,0,1]', 'row_ror:4', 'row_ror:8'):
        for r in R16: p(f"v_add_f32_dpp v{r}, v{r}, v{r} {ctl} row_mask:0xf bank_mask:0xf")
    allreduce(p, R16, D16, steps=(16, 32))
    p("v_and_b32 v6, 1, v0")
    p("v_lshlrev_b32 v6, 5, v6")
    p("v_lshl_add_u32 v6, v2, 7, v6")
    p(f"ds_write_b128 v6, {vr(G8,4)} offset:1024"); p(f"ds_write_b128 v6, {vr(G8+4,4)} offset:1040")
    p(f"ds_write_b128 v6, {vr(G8+8,4)} offset:1088"); p(f"ds_write_b128 v6, {vr(G8+12,4)} offset:1104")
    p("v_and_b32 v5, 15, v0")
    p("v_lshlrev_b32 v5, 2, v5")
    p("s_waitcnt lgkmcnt(0)")
    p("s_barrier")
    for w in range(4):
        p(f"ds_read_b32 v{T+w}, v5 offset:{1024+w*128}")
        p(f"ds_read_b32 v{T+4+w}, v5 offset:{1024+w*128+64}")
    p("s_lshl_b32 s46, s36, 2")
    p("s_waitcnt lgkmcnt(0)")
    p(f"v_add_f32 v{T}, v{T}, v{T+1}"); p(f"v_add_f32 v{T+2}, v{T+2}, v{T+3}")
    p(f"v_add_f32 v{T+4}, v{T+4}, v{T+5}"); p(f"v_add_f32 v{T+6}, v{T+6}, v{T+7}")
    p(f"v_add_f32 v{T}, v{T}, v{T+2}"); p(f"v_add_f32 v{T+4}, v{T+4}, v{T+6}")
    rnd_bf16(p, T); rnd_bf16(p, T+4)
    p(f"v_mul_f32 v{T+1}, {f32(-LOG2E)}, v{T}")
    p(f"v_exp_f32 v{T+1}, v{T+1}"); p("s_nop 0")
    p(f"v_add_f32 v{T+1}, 1.0, v{T+1}")
    p(f"v_rcp_f32 v{T+1}, v{T+1}"); p("s_nop 0")
    p(f"v_mul_f32 v{T}, v{T}, v{T+1}")
    rnd_bf16(p, T)
    p(f"v_mul_f32 v{T}, v{T}, v{T+4}")
    rnd_bf16(p, T)
    p("s_nop 0")
    for i in range(4):
        p(f"v_readlane_b32 s{56+i}, v{T}, s46")
        if i < 3: p("s_add_u32 s46, s46, 1")
    p.nop(2)
    for i in range(4):
        unpack8(p, WD+4*i, ACC+16)
        for e in range(8):
            if i == 0: p(f"v_mul_f32 v{ACC+e}, s{56+i}, v{ACC+16+e}")
            else: p(f"v_fmac_f32 v{ACC+e}, s{56+i}, v{ACC+16+e}")
    p("v_lshlrev_b32 v5, 5, v0")
    p(f"ds_write_b128 v5, {vr(ACC,4)} offset:2048"); p(f"ds_write_b128 v5, {vr(ACC+4,4)} offset:2064")
    p("v_lshlrev_b32 v6, 3, v0")
    p("s_waitcnt lgkmcnt(0)")
    p("s_barrier")
    for w in range(4): p(f"ds_read_b64 {vr(T+2*w,2)}, v6 offset:{2048+w*2048}")
    p("s_lshl_b32 s46, s2, 11")
    p(f"s_add_u32 s46, s46, {WS_PART2}")
    p("s_waitcnt lgkmcnt(0)")
    for e in range(2):
        p(f"v_add_f32 v{T+e}, v{T+e}, v{T+2+e}"); p(f"v_add_f32 v{T+4+e}, v{T+4+e}, v{T+6+e}")
    for e in range(2): p(f"v_add_f32 v{T+e}, v{T+e}, v{T+4+e}")
    p(f"buffer_store_dwordx2 {vr(T,2)}, v6, s[72:75], s46 offen sc1")
    p("s_lshl_b32 s46, s2, 2")
    p(f"s_add_u32 s46, s46, {WS_FLAG + FL_F3}")
    p("v_mov_b32 v4, 1"); p("v_mov_b32 v5, 0")
    set_flag(p, "KT3", 36, 4, 5, 72, "s46", 1)
    p("s_endpgm")
    p.label("KT_FIN")
    p("s_sub_u32 s46, s2, 240")
    p("v_and_b32 v5, 7, v0")
    p("v_lshlrev_b32 v7, 3, v5")
    p("s_lshl_b32 s47, s46, 6")
    p("s_add_u32 s47, s47, s55")
    p(f"buffer_load_dwordx2 {vr(X,2)}, v7, s[72:75], s47 offen sc1")
    p(f"buffer_load_dwordx2 {vr(X+2,2)}, v7, s[72:75], s47 offen offset:1024 sc1")
    p("s_lshl_b32 s48, s46, 7")
    p(f"s_add_u32 s49, s48, {5*2048}")
    p("v_lshlrev_b32 v8, 4, v5")
    p(f"buffer_load_dwordx4 {vr(GB,4)}, v8, s[28:31], s49 offen")
    p("v_lshrrev_b32 v9, 3, v0")
    p("v_lshl_add_u32 v9, v9, 11, v8")
    p(f"s_add_u32 s48, s48, {WS_PART2}")
    p("s_and_b32 s56, s51, 0xffff0000")
    p("s_ashr_i32 s57, s56, 31")
    p("s_not_b32 s57, s57")
    p("s_or_b32 s57, s57, 0x80000000")
    p("s_xor_b32 s56, s56, s57")
    p("s_and_b32 s56, s56, 0xffff0000")
    p(f"v_mov_b32 v{T+8}, s56")
    p(f"v_mul_f32 v{T+8}, {f32(-LOG2E)}, v{T+8}")
    p(f"v_exp_f32 v{T+8}, v{T+8}"); p("s_nop 0")
    p(f"v_add_f32 v{T+8}, 1.0, v{T+8}")
    p(f"v_rcp_f32 v{T+8}, v{T+8}"); p("s_nop 0")
    rnd_bf16(p, T+8)
    p("v_lshlrev_b32 v6, 3, v1")
    p(f"s_mov_b32 s47, {WS_FLAG + FL_F3}")
    p(f"s_mov_b64 s[58:59], {(1 << (NFFN//2)) - 1}") if False else (p(f"s_mov_b32 s58, -1"), p(f"s_mov_b32 s59, {(1 << (NFFN//2 - 32)) - 1}"))
    wait_flags(p, "KT3", 36, 6, 2, T+12, 72, "s47", execmask="s[58:59]")
    p("s_barrier")
    for i in range(4):
        p(f"buffer_load_dwordx4 {vr(ACC+4*i,4)}, v9, s[72:75], s48 offen sc1")
        if i < 3: p("s_add_u32 s48, s48, 65536")
    p("s_waitcnt vmcnt(0)")
    for e in range(4):
        p(f"v_add_f32 v{ACC+e}, v{ACC+e}, v{ACC+4+e}"); p(f"v_add_f32 v{ACC+8+e}, v{ACC+8+e}, v{ACC+12+e}")
    for e in range(4): p(f"v_add_f32 v{ACC+e}, v{ACC+e}, v{ACC+8+e}")
    red_8_16_32(p, [ACC+e for e in range(4)], [ACC+4+e for e in range(4)])
    p("v_lshl_add_u32 v6, v2, 7, v8")
    p(f"ds_write_b128 v6, {vr(ACC,4)} offset:1024")
    p("s_waitcnt lgkmcnt(0)")
    p("s_barrier")
    p("v_cmp_gt_u32 vcc, 8, v0")
    p("s_and_saveexec_b64 s[58:59], vcc")
    p("s_cbranch_execz KT_END")
    for w in range(4): p(f"ds_read_b128 {vr(ACC+4*w,4)}, v8 offset:{1024+w*128}")
    unpack4(p, X, ACC+16); unpack4(p, X+2, ACC+20)
    p("s_waitcnt lgkmcnt(0)")
    for e in range(4):
        p(f"v_add_f32 v{ACC+e}, v{ACC+e}, v{ACC+4+e}"); p(f"v_add_f32 v{ACC+8+e}, v{ACC+8+e}, v{ACC+12+e}")
    R4 = [ACC+e for e in range(4)]
    for e in range(4): p(f"v_add_f32 v{ACC+e}, v{ACC+e}, v{ACC+8+e}")
    rnd_pairs(p, R4)
    for e in range(4): p(f"v_mul_f32 v{ACC+e}, v{ACC+e}, v{T+8}")
    rnd_pairs(p, R4)
    for e in range(4): p(f"v_add_f32 v{ACC+e}, v{ACC+e}, v{ACC+16+e}")
    rnd_pairs(p, R4)
    for e in range(4): p(f"v_mul_f32 v{ACC+e}, v{ACC+e}, v{GB+e}")
    rnd_pairs(p, R4)
    for e in range(4): p(f"v_add_f32 v{ACC+e}, v{ACC+e}, v{ACC+20+e}")
    for e in range(2): p(f"v_cvt_pk_bf16_f32 v{ACC+e}, v{ACC+2*e}, v{ACC+2*e+1}")
    p("s_lshl_b32 s47, s54, 10")
    p("s_lshl_b32 s46, s46, 6")
    p("s_add_u32 s47, s47, s46")
    p(f"buffer_store_dwordx2 {vr(ACC,2)}, v7, s[64:67], s47 offen")
    p.label("KT_END")
    p("s_endpgm")
    p.resolve(a)
    return kernel_desc(name, 256, 96, 256)
```

```python
class I:
    def __init__(s, text, l=None, v=None): s.text = text; s.l = l; s.v = v
class WL:
    def __init__(s, tags): s.tags = set(tags)
class WV:
    def __init__(s, tags): s.tags = set(tags)
class Call:
    def __init__(s, fn): s.fn = fn

class Prog:
    def __init__(s): s.items = []
    def __call__(s, x, l=None, v=None):
        if isinstance(x, str):
            for line in x.split('\n'):
                line = line.strip()
                if line: s.items.append(I(line, l, v))
        elif isinstance(x, list):
            for y in x: s(y)
        else: s.items.append(x)
    def label(s, n): s.items.append(I(n + ':'))
    def nop(s, n):
        while n > 0:
            k = min(n, 16); s.items.append(I(f"s_nop {k-1}")); n -= k
    def resolve(s, a):
        lq, vq = [], []
        st = {'lq': lq, 'vq': vq}
        def need(q, tags, name, mx):
            idx = [i for i, t in enumerate(q) if t in tags]
            if not idx: return
            last = max(idx); n = len(q) - last - 1
            del q[:last+1]
            a(f"s_waitcnt {name}({min(n, mx)})")
        for it in s.items:
            if isinstance(it, I):
                t = it.text
                a(t) if not t.endswith(':') else a.label(t[:-1])
                if t.startswith('ds_'): st['lq'].append(it.l)
                elif t.startswith('buffer_') or t.startswith('global_'): st['vq'].append(it.v)
                elif t.startswith('s_waitcnt'):
                    import re
                    m = re.search(r'lgkmcnt\((\d+)\)', t)
                    if m:
                        n = int(m.group(1)); q = st['lq']; del q[:max(0, len(q)-n)]
                    m = re.search(r'vmcnt\((\d+)\)', t)
                    if m:
                        n = int(m.group(1)); q = st['vq']; del q[:max(0, len(q)-n)]
            elif isinstance(it, WL): need(st['lq'], it.tags, 'lgkmcnt', 15)
            elif isinstance(it, WV): need(st['vq'], it.tags, 'vmcnt', 63)
            elif isinstance(it, Call): it.fn(st)

class Gap:
    def __init__(s): s.salu = []; s.mem = []; s.valu = []; s.used = 0

def txt(x): return x.text if isinstance(x, I) else x

def emit_stream(p, mf, gaps):
    for t, g in zip(mf, gaps):
        p(t)
        for x in g.salu: p(x)
        for x in g.mem: p(x)
        last = None
        for x in g.valu:
            if isinstance(x, str) and isinstance(last, str) and last.startswith('v_exp') and not x.startswith('v_exp'):
                d = last.split()[1].rstrip(',')
                if d in [y.strip(',') for y in x.split()[2:]]: p("s_nop 0")
            p(x); last = x

def fill(gaps, stream, cap=8, window=4, tight=False):
    if not stream: return
    tot = sum(c for _, c in stream)
    free = sum(max(0, cap - g.used) for g in gaps)
    while tot > free:
        cap += 4
        free = sum(max(0, cap - g.used) for g in gaps)
    ratio = tot / free
    pend = list(stream); budget = 0.0
    def regs(x): return [y.strip(',') for y in x.split()[1:] if y.strip(',').startswith('v')]
    for g in gaps:
        room = cap - g.used
        if room <= 0: continue
        budget += room * ratio
        while pend:
            k = None
            for w in range(min(window, len(pend))):
                t, c = pend[w]
                lone = tight and room == 8 and c == 4 and len(pend) > 6 and sum(1 for q in pend[:window] if q[1] == 4) < 3
                if c <= room and c <= budget + (8 if tight else 4) and not lone:
                    r = regs(t); ok = True
                    for w2 in range(w):
                        r2 = regs(pend[w2][0])
                        if r2[0] in r or r[0] in r2: ok = False
                    if ok: k = w; break
            if k is None: break
            t, c = pend.pop(k)
            g.valu.append(t); room -= c; budget -= c; g.used += c
    for t, c in pend: gaps[-1].valu.append(t)
```

```python
import sys, os, re
sys.path.insert(0, os.path.dirname(os.path.abspath(__file__)))
from asmlib import *
from common import NAME
import fused
from gen import add_stamps
def build(stamps=False, aslist=False):
    ref = open('cdna_kernels/' + NAME + '.s.ref').read().split('\n')
    head = [l for l in ref if l.startswith(';') and '@launch' not in l and 'Override launch' not in l and 'grid=ceil' not in l]
    kn = NAME + '_kernel'
    head.append(f"; @launch {'kernel=' + kn + ' ' if aslist else ''}grid=(256,1,1) block=(256,1,1) lds={fused.F_LDS}")
    a = Asm()
    a('.amdgcn_target "amdgcn-amd-amdhsa--gfx950"'); a('.text')
    desc = fused.fused(a, kn)
    body = a.text()
    if stamps:
        body = add_stamps(body, [kn]); desc = re.sub(r'next_free_sgpr \d+', 'next_free_sgpr 102', desc)
    return '\n'.join(head) + '\n' + body + '.section .rodata,"a"\n' + desc
if __name__ == '__main__':
    out = sys.argv[1] if len(sys.argv) > 1 else 'cdna_kernels/' + NAME + '.s'
    dev = len(sys.argv) > 1
    open(out, 'w').write(build(stamps='stamps' in sys.argv, aslist=dev))
    print('wrote', out, os.path.getsize(out))
```

```python
import sys, math
from asmlib import *
from sched import *
from k0 import rnd_bf16, unpack8, rnd_pairs
from common import NAME, CS, EPS, KA_X, KA_WU, KA_OUT, KA_WS
LOG2E = math.log2(math.e)
MFMA = "v_mfma_f32_16x16x32_bf16"
OPT = set(sys.argv)
WS_EPOCH, WS_F0X, WS_F0M, WS_FO, WS_F1, WS_F3, WS_F0R, WS_KEYS, WS_MP = 0, 0x1000, 0x3000, 0x5000, 0x5800, 0x6000, 0x7000, 0x8000, 0x10000
WS_CROW, WS_PART2, WS_XF, WS_OF, WS_PART1, WS_SIZE = 0x300000, 0x400000, 0x100000, 0x800000, 0x1800000, 0x2000000
WS_DONE = WS_F3
NFIN = 32
sOR = 86
NFFN = 112
SPIN = 1 << 18
XLA = int([x[4:] for x in sys.argv if x.startswith('xla=')][0]) if any(x.startswith('xla=') for x in sys.argv) else 4
SLP = int([x[4:] for x in sys.argv if x.startswith('slp=')][0]) if any(x.startswith('slp=') for x in sys.argv) else 1
WQTH = int([x[5:] for x in sys.argv if x.startswith('wqth=')][0]) if any(x.startswith('wqth=') for x in sys.argv) else 24
LDS_V = 65536
LDS_MQ = 131072
LDS_VOTE = LDS_MQ + 4096
STB = [8192, 24576, 65536, 40960, 81920, 98304, 114688, 139264]
LDS_MV = 155648
F_LDS = 163840
WQ_REGION = [0, 16384, 65536, 32768, 81920, 49152, 98304, 114688]
KA, VA, DK, DV, WA, WAH, DW, XV, MA, XX, FRV = 8, 12, 20, 22, 24, 28, 32, 33, 34, 39, 35
Q = 40
S = [104, 136]
P = [168, 184]
NEG, LS, ONES, TMP = 200, 216, 232, 236
DWO, PFD, MX = 244, 248, 252
XR, HB, MQ = 40, [168, 184], [200, 216]
FSET = [128, 160]
RK, RV, RWQ, RWS, RX, RWO, RPF, RA, RB, RG, RU = 32, 36, 40, 44, 48, 52, 56, 60, 64, 68, 72
RD, ROUT, RWR = 20, 60, 64
aWG, aWU, aWD, aX, aWR = 192, 208, 224, 240, 248
sG0, sG1, sD0 = 12, 13, 15
sW, sH, sQB, sTAG, sK, sV, sWL, sXO, sCNT, sWO, sPW, sPF = 76, 77, 78, 79, 80, 81, 82, 83, 84, 85, 86, 87
t0, t1, t2, t3 = 88, 89, 90, 91
sKH, sRB, sCB, sO, sSLOT, sROW, sW4, sOF, sFF, sKEY, sWROW, sWC = 4, 5, 6, 7, 8, 9, 10, 11, 14, 15, 24, 25
def R(n): return f"s[{n}:{n+3}]"

def kfrag_reads(fs, j, unit):
    kt, st = j // 4, j % 4
    f = FSET[fs] + 4*j
    return [I(f"ds_read_b128 a[{f}:{f+3}], v{KA+st} offset:{(unit % 8)*8192 + kt*4096}", l=('K', unit, j))]
def vfrag_reads(fs, j, unit):
    f = FSET[fs] + 4*j
    o = (unit % 8)*8192
    return [I(f"ds_read_b64_tr_b16 a[{f}:{f+1}], v{VA+j} offset:{o}", l=('V', unit, j)),
            I(f"ds_read_b64_tr_b16 a[{f+2}:{f+3}], v{VA+j} offset:{o+4096}", l=('V', unit, j))]
def qk_half(fs, sb, czero=False):
    mf = []
    order = [(kt, g, st) for kt in range(2) for g in range(4) for st in range(4)] if 'nochain' not in OPT else \
            [(kt, g, st) for kt in range(2) for st in range(4) for g in range(4)]
    for i, (kt, g, st) in enumerate(order):
        f = FSET[fs] + 4*(kt*4 + st)
        d = S[sb] + g*8 + kt*4
        q = Q + (g*4 + st)*4
        c = ('0' if czero else vr(NEG + g*4, 4)) if st == 0 else vr(d, 4)
        mf.append((f"{MFMA} {vr(d,4)}, a[{f}:{f+3}], {vr(q,4)}, {c}", (i // 4, i % 4)))
    return mf
def pv_half(fs, pb, czero=False):
    mf = []
    for j in range(8):
        f = FSET[fs] + 4*j
        for g in range(4):
            o = (j*4 + g)*4
            p = P[pb] + g*4
            mf.append((f"{MFMA} {ar(o,4)}, a[{f}:{f+3}], {vr(p,4)}, {'0' if czero else ar(o,4)}", (j, g)))
        if j % 2 == 1:
            g = j // 2
            p = P[pb] + g*4
            mf.append((f"{MFMA} {vr(LS+g*4,4)}, {vr(ONES,4)}, {vr(p,4)}, {'0' if czero else vr(LS+g*4,4)}", None))
    return mf
def sm_stream(sb, pb):
    st = []
    for i in range(32):
        st.append((f"v_exp_f32 v{TMP + i % 8}, v{S[sb]+i}", 8))
        if i >= 3 and i % 2 == 1:
            st.append((f"v_cvt_pk_bf16_f32 v{P[pb]+(i-3)//2}, v{TMP+(i-3)%8}, v{TMP+(i-2)%8}", 4))
    st.append((f"v_cvt_pk_bf16_f32 v{P[pb]+15}, v{TMP+6}, v{TMP+7}", 4))
    return st
def dma_unit(kind, unit):
    base = (unit % 8)*8192 + (0 if kind == 'K' else LDS_V)
    srdn, sreg, vo = ((RK, sK, DK) if kind == 'K' else (RV, sV, DV))
    tag = (kind, unit)
    return [(f"s_add_u32 m0, s{sWL}, {base}", I(f"buffer_load_dwordx4 v{vo}, {R(srdn)}, s{sreg} offen lds", v=tag), None),
            (None, I(f"buffer_load_dwordx4 v{vo+1}, {R(srdn)}, s{sreg} offen offset:1024 lds", v=tag), f"s_add_u32 s{sreg}, s{sreg}, 8192")]
def wo_stage(st):
    out = []
    for k in range(4):
        out.append((f"s_add_u32 m0, s{sW4}, {STB[st % 8]}" if k == 0 else None,
                    I(f"buffer_load_dwordx4 v{DWO+k}, {R(RWO)}, s{sWO} offen offset:{k*1024} lds", v=('W', st)),
                    f"s_add_u32 s{sWO}, s{sWO}, 131072" if k == 3 else None))
    return out
def dma_plain(p, ops):
    for (sb, mem, sa) in ops:
        if sb: p(sb); p("s_nop 0")
        p(mem)
        if sa: p(sa)
def block(halves, dmas=()):
    mf = []; gaps = []; pos = {}
    for hi, (m, usetag, pf) in enumerate(halves):
        for (t, jg) in m:
            if jg is not None: pos[(hi,) + jg] = len(mf)
            mf.append(t); gaps.append(Gap())
    pre = []
    for hi, (m, usetag, pf) in enumerate(halves):
        for j in range(8):
            if pf is not None:
                g = gaps[pos[(hi, j, 0)]]
                for r in pf(j): g.mem.append(r); g.used += 4
            if j % 4 == 0:
                w = WL({usetag + (jj,) for jj in range(j, j+4)})
                i = pos[(hi, j, 0)]
                if i == 0: pre.append(w)
                else: gaps[i-1].salu.append(w)
    if len(halves) == 1: slots = [(0, 1), (0, 2), (0, 5), (0, 6)]
    elif len(dmas) <= 4: slots = [(0, 1), (0, 5), (1, 1), (1, 5)]
    else: slots = [(0, 1), (0, 2), (0, 5), (0, 6), (1, 1), (1, 2), (1, 5), (1, 6)]
    assert len(dmas) <= len(slots)
    for (sb, mem, sa), hj in zip(dmas, slots):
        if sb: gaps[pos[hj + (1,)]].salu.append(sb)
        g = gaps[pos[hj + (2,)]]
        g.mem.append(mem); g.used += 8
        if sa: gaps[pos[hj + (3,)]].salu.append(sa)
    return pre, mf, gaps, pos
def tile_max(p, extra=None):
    for g in range(4):
        b = S[0] + g*8
        p(f"v_max3_f32 v{TMP+g}, v{b}, v{b+1}, v{b+2}")
        p(f"v_max3_f32 v{TMP+g}, v{TMP+g}, v{b+3}, v{b+4}")
        p(f"v_max3_f32 v{TMP+g}, v{TMP+g}, v{b+5}, v{b+6}")
        if extra is None: p(f"v_max_f32 v{TMP+g}, v{TMP+g}, v{b+7}")
        else: p(f"v_max3_f32 v{TMP+g}, v{TMP+g}, v{b+7}, v{extra+g}")
    allreduce(p, [TMP+g for g in range(4)], [TMP+4+g for g in range(4)], op='v_max_f32', steps=(16, 32))
def unpack4(p, src, dst):
    for i in range(2):
        p(f"v_lshlrev_b32 v{dst+2*i}, 16, v{src+i}")
        p(f"v_and_b32 v{dst+2*i+1}, 0xffff0000, v{src+i}")
def red_ror(p, regs, tmps, rors, op='v_add_f32'):
    n = len(regs)
    for ro in rors:
        p.nop(max(0, 3 - n) if ro != rors[0] else 2)
        for r in regs: p(f"{op}_dpp v{r}, v{r}, v{r} {ro} row_mask:0xf bank_mask:0xf")
    allreduce(p, regs, tmps, op=op, steps=(16, 32))
def mksrd(p, d, base, nbytes):
    p(f"s_mov_b32 s{d}, s{base}"); p(f"s_mov_b32 s{d+1}, s{base+1}"); p(f"s_mov_b32 s{d+2}, {nbytes}"); p(f"s_mov_b32 s{d+3}, 0x20000")
def mksrd_off(p, d, base, soff, nbytes):
    p(f"s_add_u32 s{d}, s{base}, s{soff}"); p(f"s_addc_u32 s{d+1}, s{base+1}, 0"); p(f"s_mov_b32 s{d+2}, {nbytes}"); p(f"s_mov_b32 s{d+3}, 0x20000")

def wait_tags(p, lab, loads, regs, execmask=None, slp=None):
    p(f"s_mov_b32 s{t3}, {SPIN}")
    if execmask: p(f"s_mov_b64 exec, {execmask}")
    p.label(f"{lab}_loop")
    for l in loads: p(l)
    p("s_waitcnt vmcnt(0)")
    p(f"v_cmp_ne_u32 vcc, s{sTAG}, v{regs[0]}")
    for r in regs[1:]:
        p(f"v_cmp_ne_u32 s[2:3], s{sTAG}, v{r}") if False else None
    for r in regs[1:]:
        p(f"v_cmp_ne_u32 s[92:93], s{sTAG}, v{r}") if False else None
    for r in regs[1:]:
        p(f"s_mov_b64 s[{t0}:{t1}], vcc")
        p(f"v_cmp_ne_u32 vcc, s{sTAG}, v{r}")
        p(f"s_or_b64 vcc, vcc, s[{t0}:{t1}]")
    p(f"s_sub_u32 s{t3}, s{t3}, 1")
    p(f"s_cbranch_scc1 {lab}_out")
    p(f"s_cbranch_vccz {lab}_out")
    p(f"s_sleep {slp or SLP}")
    p(f"s_branch {lab}_loop")
    p.label(f"{lab}_out")
    if execmask: p("s_mov_b64 exec, -1")
def w0_only(p, lab):
    p(f"s_cmp_lg_u32 s{sW}, 0"); p(f"s_cbranch_scc1 {lab}")
def set_flag(p, lab, instr, execmask):
    p("s_waitcnt vmcnt(0)")
    p("s_barrier")
    w0_only(p, f"{lab}_sig")
    p(f"s_mov_b64 exec, {execmask}")
    p(instr)
    p("s_mov_b64 exec, -1")
    p.label(f"{lab}_sig")

def addr_regs(p):
    for s_ in range(4):
        p(f"v_add_u32 v5, {4*s_}, v4"); p("v_xor_b32 v5, v5, v3"); p("v_lshlrev_b32 v5, 4, v5")
        p(f"v_lshl_add_u32 v{KA+s_}, v3, 8, v5")
    p("v_lshrrev_b32 v6, 2, v3"); p("v_lshl_add_u32 v7, v4, 2, v6")
    p("v_and_b32 v36, 7, v7"); p("v_lshlrev_b32 v36, 1, v36"); p("v_bfe_u32 v37, v3, 1, 1")
    p("v_and_b32 v38, 1, v3"); p("v_lshlrev_b32 v38, 3, v38"); p("v_lshl_add_u32 v38, v7, 8, v38"); p(f"v_add_u32 v38, {LDS_V}, v38")
    for dt in range(8):
        p(f"v_add_u32 v5, {2*dt}, v37"); p("v_xor_b32 v5, v5, v36"); p(f"v_lshl_add_u32 v{VA+dt}, v5, 4, v38")
    p("v_lshl_add_u32 v7, v2, 3, v4")
    for i in range(2):
        p(f"v_add_u32 v5, {4*i}, v7"); p("v_and_b32 v5, 15, v5"); p("v_xor_b32 v5, v5, v3"); p("v_lshlrev_b32 v5, 4, v5")
        p(f"v_lshl_add_u32 v{DK+i}, v7, 8, v5")
        p(f"v_add_u32 v5, {4*i}, v4"); p("v_lshlrev_b32 v5, 1, v5"); p("v_xor_b32 v5, v5, v3"); p("v_lshlrev_b32 v5, 4, v5")
        p(f"v_lshl_add_u32 v{DV+i}, v7, 8, v5")
    p("v_lshl_add_u32 v7, v4, 3, v6"); p("v_and_b32 v36, 3, v3")
    for s_ in range(4):
        p(f"v_xor_b32 v5, {s_}, v6"); p("v_lshl_add_u32 v5, v5, 2, v36"); p("v_lshlrev_b32 v5, 4, v5")
        p(f"v_lshl_add_u32 v{WA+s_}, v7, 8, v5"); p(f"v_add_u32 v{WAH+s_}, 0x10000, v{WA+s_}")
    p(f"v_lshlrev_b32 v{MA}, 6, v4"); p(f"v_add_u32 v{MA}, {LDS_MQ}, v{MA}")
    for r in range(4): p(f"v_mov_b32 v{ONES+r}, 0x3f803f80")
    p("v_lshrrev_b32 v5, 3, v1"); p("v_and_b32 v6, 7, v1"); p("v_lshlrev_b32 v7, 1, v4"); p("v_xor_b32 v6, v6, v7"); p("v_lshlrev_b32 v6, 4, v6")
    p(f"v_lshl_add_u32 v{DWO}, v5, 10, v6")
    for i in range(1, 4): p(f"v_add_u32 v{DWO+i}, {7*1024*i}, v{DWO}")
    owner_regs(p, PFD, PFD+1, PFD+3)
    p(f"v_lshrrev_b32 v{PFD+1}, 1, v{PFD+1}")
    p("v_lshrrev_b32 v5, 1, v0"); p(f"v_mul_u32_u24 v5, 14336, v5"); p("v_and_b32 v6, 1, v0"); p(f"v_lshl_add_u32 v{PFD+2}, v6, 4, v5")

def cm(k): return (k // 2)*128 + (k % 2)*64
def owner_regs(p, VX, VM, VP):
    p("v_lshrrev_b32 v5, 5, v1"); p("v_bfe_u32 v6, v1, 3, 2"); p("v_and_b32 v7, 7, v1")
    p(f"v_lshlrev_b32 v{VP}, 10, v5"); p(f"v_lshl_add_u32 v{VP}, v6, 8, v{VP}"); p(f"v_lshl_add_u32 v{VP}, v7, 4, v{VP}")
    p("v_lshl_add_u32 v5, v5, 2, v6")
    p(f"v_lshlrev_b32 v{VM}, 4, v5"); p(f"v_lshl_add_u32 v{VM}, v2, 9, v{VM}")
    p(f"v_lshrrev_b32 v5, 1, v{VM}"); p(f"v_lshl_add_u32 v{VX}, v7, 10, v5")

def late_setup(p):
    p(f"s_lshl_b32 s{t0}, s{sH}, 19")
    mksrd_off(p, RK, 6, t0, 0x80000); mksrd_off(p, RV, 8, t0, 0x80000)
    p(f"s_bfe_u32 s{t1}, s2, 0x10002")
    p(f"s_lshl_b32 s{t0}, s{t1}, 21")
    mksrd_off(p, RWO, 12, t0, 2048*512*2)
    p(f"s_lshr_b32 s{sPW}, s2, 3"); p(f"s_lshl_b32 s{sPW}, s{sPW}, 16"); p(f"s_lshl_b32 s{t0}, s{sW}, 14"); p(f"s_add_u32 s{sPW}, s{sPW}, s{t0}")
    p(f"s_mul_i32 s{sPF}, s2, 7168")
    p(f"s_cmp_eq_u32 s{sW}, 0"); p(f"s_cselect_b32 s{RPF}, s18, s20"); p(f"s_cselect_b32 s{RPF+1}, s19, s21")
    p(f"s_cmp_eq_u32 s{sW}, 2"); p(f"s_cselect_b32 s{RPF}, s22, s{RPF}"); p(f"s_cselect_b32 s{RPF+1}, s23, s{RPF+1}")
    p(f"s_cmp_eq_u32 s{sW}, 3"); p(f"s_cselect_b32 s{RPF+2}, 0, {512*1792*2}"); p(f"s_mov_b32 s{RPF+3}, 0x20000")
    p(f"s_cmp_lt_u32 s2, {NFFN}"); p(f"s_cselect_b32 s{t0}, {512*1792*2}, 0")
    for d, b in ((RG, 18), (RU, 20)):
        p(f"s_mov_b32 s{d}, s{b}"); p(f"s_mov_b32 s{d+1}, s{b+1}"); p(f"s_mov_b32 s{d+2}, s{t0}"); p(f"s_mov_b32 s{d+3}, 0x20000")
    p("s_mov_b32 s20, s22"); p("s_mov_b32 s21, s23"); p(f"s_mov_b32 s22, s{t0}"); p("s_mov_b32 s23, 0x20000")
    mksrd(p, ROUT, 28, 2048*512*2); mksrd(p, RWR, 16, 1024)
    p(f"s_mov_b32 s{sK}, 0"); p(f"s_mov_b32 s{sV}, 0")
    p(f"s_lshl_b32 s{sWL}, s{sW}, 11")
    p(f"s_mov_b32 s{sKH}, s{t1}")
    p(f"s_and_b32 s{sRB}, s2, 3"); p(f"s_lshl_b32 s{sRB}, s{sRB}, 2"); p(f"s_lshr_b32 s{t0}, s2, 6"); p(f"s_add_u32 s{sRB}, s{sRB}, s{t0}")
    p(f"s_bfe_u32 s{sCB}, s2, 0x30003")
    p(f"s_lshl_b32 s{sW4}, s{sW}, 12")
    p(f"s_lshl_b32 s{sWO}, s{sW}, 15"); p(f"s_lshl_b32 s{t0}, s{sCB}, 7"); p(f"s_add_u32 s{sWO}, s{sWO}, s{t0}")
    p(f"s_lshl_b32 s{sXO}, s{sQB}, 4"); p(f"s_lshl_b32 s{t0}, s{sW}, 2"); p(f"s_add_u32 s{sXO}, s{sXO}, s{t0}")
    p(f"s_lshl_b32 s{sXO}, s{sXO}, 10")
    p(f"s_lshl_b32 s{sOF}, s{sH}, 19"); p(f"s_add_u32 s{sOF}, s{sOF}, s{sXO}"); p(f"s_add_u32 s{sOF}, s{sOF}, {WS_OF}")
    p(f"s_add_u32 s{sXO}, s{sXO}, {WS_XF}")
    p(f"s_lshl_b32 s{sO}, s{sKH}, 3"); p(f"s_add_u32 s{sO}, s{sO}, s{sCB}")
    p(f"s_lshl_b32 s{sSLOT}, s{sRB}, 4"); p(f"s_add_u32 s{sSLOT}, s{sSLOT}, s{sO}")
    p(f"s_lshl_b32 s{sROW}, s{sSLOT}, 13")
    p(f"s_and_b32 s{sFF}, s2, 7"); p(f"s_mul_i32 s{sFF}, s{sFF}, 14"); p(f"s_lshr_b32 s{t0}, s2, 3"); p(f"s_add_u32 s{sFF}, s{sFF}, s{t0}")
    p(f"s_lshl_b32 s{sG0}, s{sFF}, 5"); p(f"s_add_u32 s{sG1}, s{sG0}, 7168")
    p(f"s_lshl_b32 s{sD0}, s{sFF}, 14"); p(f"s_add_u32 s{sD0}, s{sD0}, s{sW4}")

def eload(p):
    p(f"buffer_load_dword v35, off, {R(RWS)}, 0 offset:{WS_EPOCH} sc1")
def mktag(p, n):
    p(f"s_waitcnt vmcnt({n})")
    p(f"v_readfirstlane_b32 s{sTAG}, v35")
    p(f"s_mul_i32 s{sTAG}, s{sTAG}, 0x9E3779B1")
    p(f"s_add_u32 s{sTAG}, s{sTAG}, 0x7F4A7C15")

def fused(a, name):
    kernel_begin(a, name)
    p = Prog()
    saved = {}
    p("s_cmp_ge_u32 s2, 256")
    p("s_cbranch_scc1 F_END")
    p("s_load_dwordx16 s[4:19], s[0:1], 0")
    p(f"s_load_dwordx8 s[20:27], s[0:1], {KA_WU}")
    p(f"s_load_dwordx2 s[28:29], s[0:1], {KA_OUT}")
    p(f"s_load_dwordx2 s[30:31], s[0:1], {KA_WS}")
    p("v_and_b32 v1, 63, v0")
    p("v_lshrrev_b32 v2, 6, v0")
    p("v_and_b32 v3, 15, v1")
    p(f"v_readfirstlane_b32 s{sW}, v2")
    p("v_lshrrev_b32 v4, 4, v1")
    p(f"s_and_b32 s{sH}, s2, 7"); p(f"s_lshl_b32 s{sH}, s{sH}, 2"); p(f"s_bfe_u32 s{t0}, s2, 0x20003"); p(f"s_add_u32 s{sH}, s{sH}, s{t0}")
    p(f"s_lshr_b32 s{sQB}, s2, 5")
    p(f"v_lshlrev_b32 v{XV}, 4, v1")
    p(f"s_cmp_eq_u32 s{sW}, 1"); p("s_cbranch_scc1 F_MOD")
    p(f"s_cmp_eq_u32 s{sW}, 3"); p("s_cbranch_scc1 F_WQ")
    X0, XF32 = 40, 56
    p("v_and_b32 v5, 3, v1"); p("v_lshrrev_b32 v6, 2, v1")
    p("v_lshlrev_b32 v7, 10, v5"); p("v_lshl_add_u32 v7, v6, 4, v7")
    p(f"s_lshl_b32 s{t0}, s{sQB}, 8"); p(f"s_lshl_b32 s{t1}, s{sH}, 3"); p(f"s_add_u32 s{t0}, s{t0}, s{t1}")
    p(f"s_lshl_b32 s{t1}, s{sW}, 1"); p(f"s_add_u32 s{t0}, s{t0}, s{t1}")
    p(f"s_lshl_b32 s{t1}, s{t0}, 10")
    p("v_lshrrev_b32 v39, 2, v6"); p("v_lshlrev_b32 v39, 17, v39"); p("v_and_b32 v6, 3, v6")
    p("v_lshl_add_u32 v39, v6, 6, v39"); p("v_lshl_add_u32 v39, v5, 4, v39")
    p("s_waitcnt lgkmcnt(0)")
    mksrd(p, RX, 4, 2048*512*2)
    for m in range(4): p(f"buffer_load_dwordx4 {vr(X0+4*m,4)}, v7, {R(RX)}, s{t1} offen offset:{m*256}")
    mksrd(p, RWS, 30, WS_SIZE)
    eload(p)
    p(f"s_lshr_b32 s{t2}, s{t0}, 4"); p(f"s_lshl_b32 s{t2}, s{t2}, 10"); p(f"s_and_b32 s{t0}, s{t0}, 15"); p(f"s_lshl_b32 s{t0}, s{t0}, 6")
    p(f"s_add_u32 s3, s{t2}, s{t0}"); p(f"s_add_u32 s3, s3, {WS_XF}")
    late_setup(p); addr_regs(p)
    p("; MARKL")
    p("s_waitcnt vmcnt(1)")
    p("; MARKM")
    for m in range(4): unpack8(p, X0+4*m, XF32+8*m)
    p(f"v_add_f32 v{X0}, v{XF32}, v{XF32+1}"); p(f"v_mul_f32 v{X0+1}, v{XF32}, v{XF32}")
    p(f"v_add_f32 v{X0+2}, v{XF32+2}, v{XF32+3}"); p(f"v_mul_f32 v{X0+3}, v{XF32+1}, v{XF32+1}")
    for e in range(4, 32): p(f"v_add_f32 v{X0+2*(e%2)}, v{X0+2*(e%2)}, v{XF32+e}")
    for e in range(2, 32): p(f"v_fmac_f32 v{X0+1+2*(e%2)}, v{XF32+e}, v{XF32+e}")
    p(f"v_add_f32 v{X0}, v{X0}, v{X0+2}"); p(f"v_add_f32 v{X0+1}, v{X0+1}, v{X0+3}")
    red_ror(p, [X0, X0+1], [X0+2, X0+3], ['row_ror:4', 'row_ror:8'])
    p(f"v_mul_f32 v{X0}, {f32(1/512)}, v{X0}"); p(f"v_mul_f32 v{X0+1}, {f32(1/512)}, v{X0+1}")
    p(f"v_fma_f32 v{X0+1}, -v{X0}, v{X0}, v{X0+1}"); p(f"v_max_f32 v{X0+1}, 0, v{X0+1}")
    rnd_bf16(p, X0); rnd_bf16(p, X0+1)
    p(f"v_add_f32 v{X0+1}, {f32(EPS)}, v{X0+1}"); rnd_bf16(p, X0+1)
    p(f"v_sqrt_f32 v{X0+1}, v{X0+1}"); p("s_nop 0"); rnd_bf16(p, X0+1)
    p(f"v_rcp_f32 v{X0+1}, v{X0+1}"); p("s_nop 0")
    p(f"v_mul_f32 v{X0}, -v{X0}, v{X0+1}") if False else p(f"v_mul_f32_e64 v{X0}, -v{X0}, v{X0+1}")
    for m in range(4):
        for e in range(8): p(f"v_fma_f32 v{XF32+8*m+e}, v{XF32+8*m+e}, v{X0+1}, v{X0}")
        for e in range(4): p(f"v_cvt_pk_f16_f32 v{88+4*m+e}, v{XF32+8*m+2*e}, v{XF32+8*m+2*e+1}")
        p(f"buffer_store_dwordx4 {vr(88+4*m,4)}, v39, {R(RWS)}, s3 offen sc1")
        if m < 3: p("s_add_u32 s3, s3, 524288")
    mktag(p, 4)
    p(f"s_lshl_b32 s{t0}, s{sQB}, 8"); p(f"s_add_u32 s{t2}, s{t0}, {WS_F0X}")
    p(f"s_lshl_b32 s{t0}, s{sH}, 3"); p(f"s_lshl_b32 s{t1}, s{sW}, 1"); p(f"s_add_u32 s{t0}, s{t0}, s{t1}")
    p(f"v_lshlrev_b32 v5, 11, v1"); p(f"v_add_u32 v5, s{t0}, v5"); p(f"v_mov_b32 v6, s{sTAG}")
    p("; MARKN")
    p("s_waitcnt vmcnt(0)")
    p("; MARKO")
    p("s_mov_b64 exec, 15")
    p(f"buffer_store_dword v6, v5, {R(RWS)}, s{t2} offen sc1")
    p("s_mov_b64 exec, -1")
    p("s_barrier")
    w0_only(p, "F_SYNC")
    p("v_lshlrev_b32 v5, 2, v1")
    p(f"s_and_b32 s3, s{sH}, 3"); p("s_lshl_b32 s3, s3, 11"); p(f"s_add_u32 s{t2}, s{t2}, s3")
    p(f"s_and_b32 s3, s2, 31"); p("s_lshl_b32 s3, s3, 8"); p(f"s_add_u32 s3, s3, {WS_F0M}")
    wait_tags(p, "F0", [f"buffer_load_dword v40, v5, {R(RWS)}, s{t2} offen sc1", f"buffer_load_dword v41, v5, {R(RWS)}, s3 offen sc1"], [40, 41])
    p("s_branch F_SYNC")
    p.label("F_MOD")
    p("v_and_b32 v5, 7, v1"); p("v_lshrrev_b32 v6, 3, v1")
    p(f"s_mov_b32 s{t0}, {16*6144}"); p(f"v_mul_lo_u32 v7, v6, s{t0}"); p("v_lshl_add_u32 v7, v5, 4, v7")
    p("v_lshlrev_b32 v39, 5, v5"); p("v_lshlrev_b32 v6, 5, v6")
    p(f"s_sub_u32 s{t0}, s2, 64"); p(f"s_and_b32 s{t1}, s{t0}, 31"); p(f"s_add_u32 s{t1}, s{t1}, 16"); p(f"s_lshr_b32 s{t0}, s{t0}, 5")
    p(f"s_and_b32 s{t2}, s2, 15"); p(f"s_lshr_b32 s{t3}, s2, 4")
    p("s_cmp_lt_u32 s2, 64"); p(f"s_cselect_b32 s{t1}, s{t2}, s{t1}"); p(f"s_cselect_b32 s{t0}, s{t3}, s{t0}")
    p("s_cmp_lt_u32 s2, 192"); p(f"s_cselect_b32 s{t3}, {512*3072*2}, 0")
    p("s_waitcnt lgkmcnt(0)")
    mksrd(p, RA, 24, 1024); mksrd(p, RB, 26, f"s{t3}")
    p(f"s_lshl_b32 s{t2}, s{t0}, 8")
    for k in range(2): p(f"buffer_load_dwordx4 {vr(40+4*k,4)}, v6, {R(RA)}, s{t2} offen offset:{16*k}")
    p(f"s_mul_i32 s{t2}, s{t0}, {128*6144}"); p(f"s_lshl_b32 s{t3}, s{t1}, 7"); p(f"s_add_u32 s{t2}, s{t2}, s{t3}")
    for i in range(16):
        p(f"buffer_load_dwordx4 {vr(104+4*i,4)}, v7, {R(RB)}, s{t2} offen")
        if i < 15: p(f"s_add_u32 s{t2}, s{t2}, 6144")
    mksrd(p, RWS, 30, WS_SIZE); mksrd(p, RX, 4, 2048*512*2)
    eload(p)
    p(f"s_mul_i32 s3, s{t0}, 12288"); p(f"s_lshl_b32 s{t1}, s{t1}, 8"); p(f"s_add_u32 s3, s3, s{t1}"); p(f"s_add_u32 s3, s3, {WS_MP}")
    late_setup(p)
    p("s_waitcnt vmcnt(17)")
    unpack8(p, 40, 56); unpack8(p, 44, 64)
    for e in range(16): p(f"v_mul_f32 v{72+e}, {f32(-LOG2E)}, v{56+e}")
    for e in range(16): p(f"v_exp_f32 v{72+e}, v{72+e}")
    for e in range(16): p(f"v_add_f32 v{72+e}, 1.0, v{72+e}")
    for e in range(16): p(f"v_rcp_f32 v{72+e}, v{72+e}")
    for e in range(16): p(f"v_mul_f32 v{56+e}, v{56+e}, v{72+e}")
    rnd_pairs(p, list(range(56, 72)))
    for i in range(16):
        p(f"s_waitcnt vmcnt({16-i})")
        unpack8(p, 104+4*i, 72)
        for e in range(8):
            p(f"v_mul_f32 v{40+e}, v{56+i}, v{72+e}" if i == 0 else f"v_fmac_f32 v{40+e}, v{56+i}, v{72+e}")
    p("; MARKP")
    red_ror(p, list(range(40, 48)), list(range(48, 56)), ['row_ror:8'])
    p("s_cmp_lt_u32 s2, 192"); p("s_cbranch_scc0 F_MOD2")
    p("s_mov_b64 exec, 0xff00")
    for k in range(4): p(f"v_mov_b32 v{40+k}, v{44+k}")
    p("v_add_u32 v39, 16, v39")
    p("s_mov_b64 exec, 0xffff")
    p(f"buffer_store_dwordx4 v[40:43], v39, {R(RWS)}, s3 offen sc1")
    p("s_mov_b64 exec, -1")
    p.label("F_MOD2")
    mktag(p, 0)
    p("v_lshlrev_b32 v5, 8, v1"); p(f"v_mov_b32 v6, s{sTAG}")
    p(f"s_lshl_b32 s{t0}, s2, 2"); p(f"s_add_u32 s{t1}, s{t0}, {WS_F0R - 256}"); p(f"s_add_u32 s{t0}, s{t0}, {WS_F0M}")
    p("s_cmp_lt_u32 s2, 64"); p(f"s_cselect_b32 s{t0}, s{t0}, s{t1}"); p(f"s_cselect_b32 s{t2}, -1, 1"); p(f"s_mov_b32 s{t3}, 0")
    p("s_waitcnt vmcnt(0)")
    p("; MARKQ")
    p(f"s_mov_b64 exec, s[{t2}:{t3}]")
    p(f"buffer_store_dword v6, v5, {R(RWS)}, s{t0} offen sc1")
    p("s_mov_b64 exec, -1")
    addr_regs(p)
    p("s_barrier")
    p("s_branch F_SYNC")
    p.label("F_WQ")
    if 'nocodepf' not in OPT:
        p(f"s_getpc_b64 s[{RPF}:{RPF+1}]")
        p.label("F_PC")
        p(f"s_sub_u32 s{RPF}, s{RPF}, F_PC-{name}"); p(f"s_subb_u32 s{RPF+1}, s{RPF+1}, 0")
        p(f"s_mov_b32 s{RPF+2}, F_CODE_END-{name}"); p(f"s_mov_b32 s{RPF+3}, 0x20000")
        p(f"s_lshr_b32 s{t1}, s2, 3"); p(f"s_mul_i32 s{t1}, s{t1}, 3072")
        for k in range(3): p(f"buffer_load_dwordx4 {vr(108+4*k,4)}, v{XV}, {R(RPF)}, s{t1} offen offset:{k*1024}")
    p("v_lshlrev_b32 v5, 2, v4"); p("v_xor_b32 v5, v3, v5"); p("v_lshlrev_b32 v5, 4, v5"); p(f"v_lshl_add_u32 v{DW}, v4, 13, v5")
    p(f"s_lshl_b32 s{t0}, s{sH}, 8")
    p("s_waitcnt lgkmcnt(0)")
    mksrd(p, RWS, 30, WS_SIZE)
    if 'tlb' in OPT:
        p("v_lshlrev_b32 v5, 19, v1")
        p(f"buffer_load_dword v104, v5, {R(RWS)}, 0 offen")
        p("v_lshlrev_b32 v5, 16, v1")
        p(f"buffer_load_dword v105, v5, {R(RWS)}, 0 offen offset:128")
    eload(p)
    mksrd(p, RWQ, 10, 512*4096*2)
    p(f"s_lshl_b32 s{t1}, s{sQB}, 19"); p(f"s_add_u32 s{t1}, s{t1}, s{t0}")
    for i in range(16 if 'nopre' not in OPT else 0):
        p(f"buffer_load_dwordx4 {vr(40+4*i,4)}, v{DW}, {R(RWQ)}, s{t1} offen")
        if i < 15: p(f"s_add_u32 s{t1}, s{t1}, 32768")
    p(f"s_mov_b32 s3, s{t0}")
    mksrd(p, RX, 4, 2048*512*2)
    late_setup(p)
    if 'tlb' in OPT:
        p("v_lshlrev_b32 v5, 13, v1")
        p(f"buffer_load_dword v106, v5, {R(RK)}, 0 offen"); p(f"buffer_load_dword v107, v5, {R(RV)}, 0 offen")
        p("v_lshlrev_b32 v5, 15, v1")
        p(f"buffer_load_dword v108, v5, {R(RWO)}, 0 offen")
        mksrd(p, RA, 28, 2048*512*2)
        p(f"buffer_load_dword v109, v5, {R(RA)}, 0 offen")
    if 'nopre' not in OPT: addr_regs(p); mktag(p, 0)
    p("; MARKT")
    for c in range(8):
        for i in range(16):
            p(f"s_mov_b32 m0, {WQ_REGION[c] + i*1024}")
            if c + i: p(f"s_add_u32 s3, s3, 32768")
            else: p("s_nop 0")
            p(f"buffer_load_dwordx4 v{DW}, {R(RWQ)}, s3 offen lds")
            if i % 4 == 3 and WQTH: p(f"s_waitcnt vmcnt({WQTH})")
    p("; MARKR")
    if 'nopre' in OPT: addr_regs(p); mktag(p, 0)
    p("s_waitcnt vmcnt(0)"); p("s_barrier")
    p.label("F_SYNC")
    p(Call(lambda st: (st['vq'].clear(), st['lq'].clear())))
    p("s_barrier")
    p("; MARKA")
    p(f"s_getpc_b64 s[{RWQ}:{RWQ+1}]")
    p.label("F_PC2")
    p(f"s_sub_u32 s{RWQ}, s{RWQ}, F_PC2-{name}"); p(f"s_subb_u32 s{RWQ+1}, s{RWQ+1}, 0")
    p(f"s_mov_b32 s{RWQ+2}, F_SLOW-{name}"); p(f"s_mov_b32 s{RWQ+3}, 0x20000")
    p(f"s_lshr_b32 s3, s2, 3"); p(f"s_lshl_b32 s3, s3, 2"); p(f"s_add_u32 s3, s3, s{sW}"); p("s_lshl_b32 s3, s3, 10")
    p(f"v_lshrrev_b32 v5, 2, v3"); p("v_and_b32 v6, 3, v3"); p(f"v_lshlrev_b32 v{XX}, 8, v5")
    p(f"v_lshl_add_u32 v{XX}, v4, 6, v{XX}"); p(f"v_lshl_add_u32 v{XX}, v6, 4, v{XX}")
    p("v_lshlrev_b32 v5, 3, v0")
    p(f"s_mov_b32 s{t0}, {WS_MP}")
    for kq in range(4):
        p(f"buffer_load_dwordx2 {vr(200+2*kq,2)}, v5, {R(RWS)}, s{t0} offen sc1", v='MP')
        p(f"buffer_load_dwordx2 {vr(208+2*kq,2)}, v5, {R(RWS)}, s{t0} offen offset:2048 sc1", v='MP')
        if kq < 3: p(f"s_add_u32 s{t0}, s{t0}, 12288")
    p(f"v_lshlrev_b32 v{FRV}, 3, v1"); p(f"s_mov_b32 s{t2}, {WS_F0R}")
    p(f"buffer_load_dwordx2 v[{MX}:{MX+1}], v{FRV}, {R(RWS)}, s{t2} offen sc1", v='FR')
    def x_load(ks, g):
        r = XR + (ks % 8)*16 + g*4
        return I(f"buffer_load_dwordx4 {vr(r,4)}, v{XX}, {R(RWS)}, s{sXO} offen offset:{g*1024} sc1", v=('X', ks))
    x_bump = f"s_add_u32 s{sXO}, s{sXO}, 131072"
    for ks in range(XLA):
        for g in range(4): p(x_load(ks, g))
        p(x_bump)
    p("v_lshrrev_b32 v5, 2, v0"); p("v_lshlrev_b32 v5, 6, v5"); p("v_and_b32 v6, 3, v0"); p("v_lshl_add_u32 v5, v6, 3, v5")
    p(f"v_add_u32 v5, {LDS_MQ}, v5")
    p(WV({'MP'}))
    for b in (200, 208):
        for e in range(2):
            p(f"v_add_f32 v{b+e}, v{b+e}, v{b+2+e}"); p(f"v_add_f32 v{b+4+e}, v{b+4+e}, v{b+6+e}")
        for e in range(2): p(f"v_add_f32 v{b+e}, v{b+e}, v{b+4+e}")
    rnd_pairs(p, [200, 201, 208, 209])
    for e in range(2): p(f"v_add_f32 v{208+e}, 1.0, v{208+e}")
    rnd_pairs(p, [208, 209])
    for r in (200, 201, 208, 209): p(f"v_mul_f32 v{r}, {f32(CS)}, v{r}")
    p("ds_write_b64 v5, v[208:209]"); p("ds_write_b64 v5, v[200:201] offset:32")
    p("s_waitcnt lgkmcnt(0)")
    p("s_barrier")
    def wfrag_reads(fs, j, ks):
        c, kh = ks // 2, ks % 2
        s_, par = j // 2, j % 2
        reg = WQ_REGION[c]
        av = (WA if reg < 65536 else WAH) + s_
        o = (reg % 65536) + kh*8192 + par*8
        f = FSET[fs] + 4*j
        return [I(f"ds_read_b64_tr_b16 a[{f}:{f+1}], v{av} offset:{o}", l=('F', ks, j)),
                I(f"ds_read_b64_tr_b16 a[{f+2}:{f+3}], v{av} offset:{o+1024}", l=('F', ks, j))]
    def mq_reads(ks):
        b = MQ[ks % 2]
        return [I(f"ds_read_b128 {vr(b+4*i,4)}, v{MA} offset:{ks*256 + i*16}", l=('MQ', ks)) for i in range(4)]
    def mod_stream(ks):
        st = []
        b = MQ[ks % 2]
        for g in range(4):
            for r in range(4):
                x = XR + (ks % 8)*16 + g*4 + r
                tt = TMP + ((g*4 + r) % 4)*2
                st.append((f"v_fma_mix_f32 v{tt}, v{x}, v{b+2*r}, v{b+8+2*r} op_sel_hi:[1,0,0]", 4))
                st.append((f"v_fma_mix_f32 v{tt+1}, v{x}, v{b+2*r+1}, v{b+8+2*r+1} op_sel:[1,0,0] op_sel_hi:[1,0,0]", 4))
                st.append((f"v_cvt_pk_bf16_f32 v{HB[ks%2]+g*4+r}, v{tt}, v{tt+1}", 4))
        return st
    p(mq_reads(0)); p(mq_reads(1))
    for j in range(8): p(wfrag_reads(0, j, 0))
    p(WV({('X', 0)}))
    p(WL({('MQ', 0)}))
    for t, _ in mod_stream(0): p(t)
    p("; MARKD")
    kv_after = {3: [('K', 0), ('K', 1)], 5: [('K', 2), ('K', 3)], 7: [('V', 0), ('V', 1)], 9: [('K', 4), ('K', 5)],
                11: [('V', 2), ('V', 3)], 13: [('K', 6)]}
    for ks in range(16):
        fs = ks % 2
        mf = []
        for j in range(8):
            f = FSET[fs] + 4*j
            for g in range(4):
                o = (j*4 + g)*4
                mf.append((f"{MFMA} {ar(o,4)}, a[{f}:{f+3}], {vr(HB[ks%2]+g*4,4)}, {'0' if ks == 0 else ar(o,4)}", (j, g)))
        pre = []
        if ks < 15: pre += [WV({('X', ks+1)}), WL({('MQ', ks+1)})]
        if ks in kv_after: pre.append("s_barrier")
        pf = (lambda j, ks=ks: wfrag_reads(1 - ks % 2, j, ks+1)) if ks < 15 else None
        dm = sum([dma_unit(k, u) for (k, u) in kv_after.get(ks, [])], [])
        pw, mfl, gaps, pos = block([(mf, ('F', ks), pf)], dmas=dm)
        extra = []
        if ks + 2 < 16: extra += [('L', r) for r in mq_reads(ks+2)]
        if ks + XLA < 16: extra += [('V', x_load(ks+XLA, g)) for g in range(4)]
        cand = [pos[(0, j, 3)] for j in range(8)] + [pos[(0, j, 1)] for j in range(8)] + [pos[(0, j, 2)] for j in range(8)]
        cand = [i for i in cand if gaps[i].used == 0 and not gaps[i].salu]
        assert len(extra) <= len(cand)
        for (kind, op), i in zip(extra, cand):
            gaps[i].mem.append(op); gaps[i].used += 4 if kind == 'L' else 8
        if ks < 15: fill(gaps, mod_stream(ks+1))
        if ks + XLA < 16: gaps[-1].valu.append(x_bump)
        p(pre); p(pw)
        if ks in (4, 8, 12): p("; MARK" + {4: 'a', 8: 'b', 12: 'c'}[ks])
        emit_stream(p, mfl, gaps)
    p("; MARKd")
    p(WV({('K', 0), ('K', 1), ('K', 2), ('K', 3), ('V', 0)}))
    p("s_barrier")
    p("; MARKB")
    for j in range(8): p(kfrag_reads(0, j, 0))
    dma_plain(p, dma_unit('V', 4))
    p(f"v_cmp_ne_u32 vcc, s{sTAG}, v{MX}"); p(f"s_mov_b64 s[{t0}:{t1}], vcc"); p(f"v_cmp_ne_u32 vcc, s{sTAG}, v{MX+1}")
    p(f"s_or_b64 vcc, vcc, s[{t0}:{t1}]")
    p("s_cbranch_vccz F0R_done")
    p(Call(lambda st: saved.__setitem__('vq', list(st['vq']))))
    wait_tags(p, "F0R", [f"buffer_load_dwordx2 v[{MX}:{MX+1}], v{FRV}, {R(RWS)}, s{t2} offen sc1"], [MX, MX+1])
    p.label("F0R_done")
    p(Call(lambda st: st['vq'].__setitem__(slice(None), saved['vq'])))
    MP2 = S[1]
    p("v_lshlrev_b32 v5, 5, v0")
    p(f"s_mov_b32 s{t0}, {WS_MP + 4096}")
    for kq in range(4):
        for k in range(2): p(f"buffer_load_dwordx4 {vr(MP2+8*kq+4*k,4)}, v5, {R(RWS)}, s{t0} offen offset:{16*k} sc1", v=('MP2', 0))
        if kq < 3: p(f"s_add_u32 s{t0}, s{t0}, 12288")
    p(f"v_add_u32 v5, {LDS_MV}, v5")
    p(f"s_cmp_eq_u32 s{sW}, 2"); p(f"s_cselect_b32 s{t2}, 1.0, 0")
    for g in range(4):
        for s_ in range(4):
            for h in range(2):
                o = ((2*s_ + h)*4 + g)*4
                for r in range(4): p(f"v_accvgpr_read_b32 v{TMP + (h*4 + r)}, a{o+r}")
            for k in range(4): p(f"v_cvt_pk_bf16_f32 v{Q+(g*4+s_)*4+k}, v{TMP+2*k}, v{TMP+2*k+1}")
    p.nop(2)
    pw, mfl, gaps, pos = block([(qk_half(0, 0, czero=True), ('K', 0), lambda j: kfrag_reads(1, j, 1))])
    p(pw); emit_stream(p, mfl, gaps)
    p.nop(8)
    tile_max(p)
    for g in range(4):
        for r in range(4): p(f"v_sub_f32 v{NEG+g*4+r}, 0, v{TMP+g}")
        for r in range(8): p(f"v_sub_f32 v{S[0]+g*8+r}, v{S[0]+g*8+r}, v{TMP+g}")
    p(WV({('MP2', 0)}))
    for e in range(8):
        p(f"v_add_f32 v{MP2+e}, v{MP2+e}, v{MP2+8+e}"); p(f"v_add_f32 v{MP2+16+e}, v{MP2+16+e}, v{MP2+24+e}")
    for e in range(8): p(f"v_add_f32 v{MP2+e}, v{MP2+e}, v{MP2+16+e}")
    rnd_pairs(p, [MP2+e for e in range(8)])
    for e in range(8): p(f"v_add_f32 v{MP2+e}, s{t2}, v{MP2+e}")
    rnd_pairs(p, [MP2+e for e in range(8)])
    p(f"ds_write_b128 v5, {vr(MP2,4)}", l=('MV', 0, 0)); p(f"ds_write_b128 v5, {vr(MP2+4,4)} offset:16", l=('MV', 0, 0))
    p(WL({('MV', 0, 0)}))

    def period(u, tail=(), vm=12):
        if u == 0:
            halves = [(qk_half(1, 1), ('K', 1), lambda j: kfrag_reads(0, j, 2))]
        elif u <= 62:
            halves = [(qk_half(0, (u+1) % 2), ('K', u+1), lambda j: vfrag_reads(1, j, u-1)),
                      (pv_half(1, (u-1) % 2, czero=(u == 1)), ('V', u-1),
                       (lambda j: kfrag_reads(0, j, u+2)) if u <= 61 else (lambda j: vfrag_reads(0, j, 62)))]
        elif u == 63:
            halves = [(pv_half(0, 0), ('V', 62), lambda j: vfrag_reads(1, j, 63))]
        else:
            halves = [(pv_half(1, 1), ('V', 63), None)]
        if u % 2 == 0: units = [('K', x) for x in (u+7, u+8) if u <= 56]
        else: units = [('V', x) for x in (u+4, u+5) if x <= 63]
        dm = sum([dma_unit(k, x) for (k, x) in units], [])
        st = {58: 0, 60: 1, 61: 2, 62: 3, 63: 4}.get(u)
        if st is not None: dm += wo_stage(st)
        tl = list(tail)
        if u % 2 == 1 and u <= 61:
            if vm == 'A': w = WV({('K', 63), ('K', 64), ('V', 60)})
            elif vm == 'B': w = WV({('V', 61), ('V', 62), ('V', 63)})
            else: w = f"s_waitcnt vmcnt({vm})"
            tl = [w, "s_barrier"] + tl
        pw, mfl, gaps, pos = block(halves, dmas=dm)
        pf = []
        if u == 2 and 'nocodepf' not in OPT: pf = [(f"buffer_load_dwordx4 {ar(aWG,4)}, v{XV}, {R(RWQ)}, s3 offen", None)]
        if u == 4: pf = [(f"buffer_load_dwordx4 {ar(aWG,4)}, v{XV}, {R(RPF)}, s{sPF} offen", f"s_add_u32 s{sPF}, s{sPF}, 1024")]
        if u in (0, 1, 6, 8): pf = [(f"buffer_load_dwordx4 {ar(aWG,4)}, v{XV}, {R(RWO)}, s{sPW} offen", f"s_add_u32 s{sPW}, s{sPW}, 1024")]
        if u == 58: pf = [(f"buffer_load_dwordx4 {ar(aWG+4*i,4)}, v{PFD+2}, {R(RG)}, s{(sG0, sG1)[i//2]} offen offset:{(i % 2)*3584}", None) for i in range(4)]
        if u == 59: pf = [(f"buffer_load_dwordx4 {ar(aWU+4*i,4)}, v{PFD+2}, {R(RU)}, s{(sG0, sG1)[i//2]} offen offset:{(i % 2)*3584}", None) for i in range(4)]
        if u == 60: pf = [(f"buffer_load_dwordx4 {ar(aWD+4*i,4)}, v{XV}, {R(RD)}, s{sD0} offen offset:{i*1024}", None) for i in range(4)]
        if u == 61: pf = [(f"buffer_load_dwordx2 {ar(aX+2*k,2)}, v{PFD}, {R(RX)}, s{sROW} offen offset:{cm(k)}", None) for k in range(4)]
        if u == 62: pf = [(f"buffer_load_dwordx2 {ar(aWR+2*k,2)}, v{PFD+1}, {R(RWR)}, 0 offen offset:{cm(k)}", None) for k in range(4)]
        hl = len(halves) - 1
        if 58 <= u <= 63 and 'nowopf' not in OPT:
            n0 = (u - 58)*2
            for n in range(n0, min(n0 + 2, 11)):
                i = pos[(hl, (2, 6)[n % 2], 1)] if u < 63 else pos[(0, (3, 7)[n % 2], 1)]
                assert gaps[i].used == 0, (u, n)
                if n == 0: gaps[0].salu.append(f"s_lshr_b32 s{sPW}, s2, 3"); gaps[1].salu.append(f"s_mul_i32 s{sPW}, s{sPW}, 45056")
                if n == 0: gaps[2].salu.append(f"s_mul_i32 s3, s{sW}, 11264"); gaps[3].salu.append(f"s_add_u32 s{sPW}, s{sPW}, s3"); gaps[4].salu.append(f"s_add_u32 s{sPW}, s{sPW}, {640*1024}")
                gaps[i].mem.append(I(f"buffer_load_dwordx4 {vr(MX,4)}, v{XV}, {R(RWO)}, s{sPW} offen", v=('PF', 0))); gaps[i].used += 8
                gaps[i+1].salu.append(f"s_add_u32 s{sPW}, s{sPW}, 1024")
        for (m, sa), hj in zip(pf, [(hl, 3), (hl, 7), (0, 3), (0, 7)]):
            i = pos[hj + (1,)]
            assert gaps[i].used == 0
            gaps[i].mem.append(I(m, v=('PF', 0))); gaps[i].used += 8
            if sa: gaps[i+1].salu.append(sa)
        if u <= 63: fill(gaps, sm_stream(u % 2, u % 2))
        gaps[-1].valu += tl
        p(pw); emit_stream(p, mfl, gaps)

    p("; MARKe")
    period(0)
    p(f"s_mov_b32 s{sCNT}, 0")
    period(1)
    p(Call(lambda st: saved.__setitem__('e', list(st['lq']))))
    p("; MARKf")
    p(".p2align 6")
    p.label("F_LOOP")
    for u in range(2, 10):
        if u == 9: period(u, tail=[f"s_add_u32 s{sCNT}, s{sCNT}, 1", f"s_cmp_lt_u32 s{sCNT}, 7", "s_cbranch_scc1 F_LOOP"])
        else: period(u)
    def loop_exit(st):
        ex = [(k, un - 8, j) for (k, un, j) in st['lq']]
        assert ex == saved['e'], (ex, saved['e'])
        st['lq'][:] = [(k, un + 48, j) for (k, un, j) in st['lq']]
        st['vq'][:] = [(k, un + 48) for (k, un) in st['vq']]
        assert ('K', 64) in st['vq'], st['vq']
    p(Call(loop_exit))
    p("; MARKg")
    period(58); period(59, vm='A'); period(60); period(61, vm='B'); period(62); period(63)
    p(f"s_lshr_b32 s{t2}, s{sRB}, 1"); p(f"s_lshl_b32 s{t2}, s{t2}, 1"); p(f"s_add_u32 s{t2}, s{t2}, s{sKH}"); p(f"s_lshl_b32 s{t2}, s{t2}, 7")
    p(f"s_add_u32 s{sPF}, s{t2}, {WS_FO}")
    p(f"v_lshlrev_b32 v{FRV}, 2, v3")
    p(f"buffer_load_dword v{MX}, v{FRV}, {R(RWS)}, s{sPF} offen sc1", v=('FOC', 0))
    pvm = pv_half(1, 1)
    ms = [t for t, jg in pvm if jg is None]; pvs = [t for t, jg in pvm if jg is not None]
    def epi_ops(s_, g, k):
        t = S[0] + (k % 4)*12
        ops = []
        for h in range(2):
            o = ((2*s_ + h)*4 + g)*4
            ops += [f"v_accvgpr_read_b32 v{t + h*4 + r}, a{o+r}" for r in range(4)]
        ops += [f"v_mul_f32 v{t+r}, v{t+r}, v{NEG+g}" for r in range(8)]
        ops += [f"v_cvt_pk_bf16_f32 v{t+8+r}, v{t+2*r}, v{t+2*r+1}" for r in range(4)]
        ops.append(f"buffer_store_dwordx4 {vr(t+8,4)}, v{XV}, {R(RWS)}, s{sOF} offen offset:{g*1024} sc1")
        if g == 3 and s_ < 3: ops.append(f"s_add_u32 s{sOF}, s{sOF}, 131072")
        return ops
    for t in ms: p(t)
    p(WL({('V', 63, j) for j in range(4)}))
    chk = [f"v_mov_b32 v{TMP}, {f32(2.0**40 if 'slow' not in OPT else -1.0)}", f"s_mov_b64 s[{t0}:{t1}], 0"]
    for g in range(4): chk += [f"v_rcp_f32 v{NEG+g}, v{LS+g*4}", f"v_cmp_nle_f32 vcc, v{LS+g*4}, v{TMP}", f"s_or_b64 s[{t0}:{t1}], s[{t0}:{t1}], vcc"]
    stream = sum([epi_ops(s_, g, s_*4+g) for s_ in range(4) for g in range(4)], [])
    si = 0
    for i, t in enumerate(pvs):
        if i == 16: p(WL({('V', 63, j) for j in range(4, 8)}))
        p(t)
        if i == 7:
            for x in chk: p(x)
        if i >= 15:
            lim = 85 if i < 23 else 170
            for _ in range(4):
                if si < lim: p(stream[si]); si += 1
    while si < 170: p(stream[si]); si += 1
    p("; MARKC")
    for x in stream[si:]: p(x)
    p.label("F_PUB")
    p(f"s_cmp_lg_u64 s[{t0}:{t1}], 0"); p(f"s_cselect_b32 s{t2}, 1, 0")
    p(WV({('FOC', 0)}))
    p(f"v_cmp_ne_u32 vcc, s{sTAG}, v{MX}")
    p("s_cmp_lg_u64 vcc, 0"); p(f"s_cselect_b32 s{t3}, 2, 0"); p(f"s_or_b32 s{t2}, s{t2}, s{t3}")
    p(f"v_mov_b32 v{TMP+1}, s{t2}")
    p(f"v_lshlrev_b32 v{TMP+2}, 2, v2"); p(f"v_add_u32 v{TMP+2}, {LDS_VOTE}, v{TMP+2}")
    p(f"ds_write_b32 v{TMP+2}, v{TMP+1}")
    p(f"v_mov_b32 v{TMP+2}, {LDS_VOTE}")
    p(f"s_lshl_b32 s{t0}, s{sQB}, 1"); p(f"s_lshr_b32 s{t1}, s{sH}, 4"); p(f"s_add_u32 s{t0}, s{t0}, s{t1}"); p(f"s_lshl_b32 s{t0}, s{t0}, 7")
    p(f"s_and_b32 s{t1}, s{sH}, 15"); p(f"s_lshl_b32 s{t1}, s{t1}, 2"); p(f"s_add_u32 s{t0}, s{t0}, s{t1}"); p(f"s_add_u32 s{t0}, s{t0}, {WS_FO}")
    p(f"v_mov_b32 v5, 0"); p(f"v_mov_b32 v6, s{sTAG}")
    tail_setup(p)
    p("s_waitcnt vmcnt(0) lgkmcnt(0)")
    p("s_barrier")
    p(f"ds_read_b128 {vr(TMP+4,4)}, v{TMP+2}")
    p("s_waitcnt lgkmcnt(0)")
    p(f"v_or_b32 v{TMP+4}, v{TMP+4}, v{TMP+5}")
    p(f"v_or3_b32 v{TMP+4}, v{TMP+4}, v{TMP+6}, v{TMP+7}")
    p("s_nop 0")
    p(f"v_readfirstlane_b32 s{t2}, v{TMP+4}")
    p(f"s_bitcmp1_b32 s{t2}, 0")
    p("s_cbranch_scc1 F_SLOW")
    w0_only(p, "FO_sig")
    p("s_mov_b64 exec, 1")
    p(f"buffer_store_dword v6, v5, {R(RWS)}, s{t0} offen sc1")
    p("s_mov_b64 exec, -1")
    p.label("FO_sig")
    p("; MARKF")
    p(f"s_bitcmp1_b32 s{t2}, 1")
    p("s_cbranch_scc0 FO_go")
    w0_only(p, "FO_done")
    wait_tags(p, "FOW", [f"buffer_load_dword v{MX}, v{FRV}, {R(RWS)}, s{sPF} offen sc1"], [MX])
    p.label("FO_done")
    p("s_barrier")
    p.label("FO_go")
    p(Call(lambda st: (st['vq'].clear(), st['lq'].clear())))
    tail(p)
    p.label("F_END")
    p("s_endpgm")
    p.label("F_SLOW")
    AL = NEG
    for r in range(128): p(f"v_accvgpr_write_b32 a{r}, 0")
    for r in range(16): p(f"v_mov_b32 v{LS+r}, 0")
    for g in range(4): p(f"v_mov_b32 v{MX+g}, 0xff800000")
    p(f"s_mov_b32 s{sK}, 0"); p(f"s_mov_b32 s{sV}, 0"); p(f"s_mov_b32 s{sCNT}, 0")
    p.label("F_SLOOP")
    p("s_waitcnt vmcnt(0) lgkmcnt(0)")
    p("s_barrier")
    dma_plain(p, dma_unit('K', 7)); dma_plain(p, dma_unit('V', 4))
    p("s_waitcnt vmcnt(0)")
    p("s_barrier")
    for j in range(8): p(kfrag_reads(0, j, 7))
    p("s_waitcnt lgkmcnt(0)")
    for j in range(8):
        p(vfrag_reads(1, j, 4))
        if j == 5: p("s_waitcnt lgkmcnt(0)")
    for t, _ in qk_half(0, 0, czero=True): p(t)
    p.nop(8)
    tile_max(p, extra=MX)
    for g in range(4):
        p(f"v_sub_f32 v{AL+g}, v{MX+g}, v{TMP+g}")
        p(f"v_mov_b32 v{MX+g}, v{TMP+g}")
    for g in range(4): p(f"v_exp_f32 v{AL+g}, v{AL+g}")
    for i in range(32): p(f"v_sub_f32 v{S[0]+i}, v{S[0]+i}, v{MX+i//8}")
    for i in range(32): p(f"v_exp_f32 v{S[0]+i}, v{S[0]+i}")
    p("s_nop 0")
    for i in range(16): p(f"v_cvt_pk_bf16_f32 v{P[0]+i}, v{S[0]+2*i}, v{S[0]+2*i+1}")
    for g in range(4):
        for r in range(4): p(f"v_mul_f32 v{LS+g*4+r}, v{LS+g*4+r}, v{AL+g}")
    for j in range(8):
        for g in range(4):
            o = (j*4 + g)*4
            for r in range(4): p(f"v_accvgpr_read_b32 v{TMP+r}, a{o+r}")
            for r in range(4): p(f"v_mul_f32 v{TMP+r}, v{TMP+r}, v{AL+g}")
            for r in range(4): p(f"v_accvgpr_write_b32 a{o+r}, v{TMP+r}")
    p("s_waitcnt lgkmcnt(0)")
    p.nop(2)
    for t, _ in pv_half(1, 0): p(t)
    p.nop(8)
    p(f"s_add_u32 s{sCNT}, s{sCNT}, 1"); p(f"s_cmp_lt_u32 s{sCNT}, 64"); p("s_cbranch_scc1 F_SLOOP")
    for g in range(4): p(f"v_rcp_f32 v{NEG+g}, v{LS+g*4}")
    p(f"s_sub_u32 s{sOF}, s{sOF}, {3*131072}")
    for x in stream: p(x)
    p(f"s_mov_b64 s[{t0}:{t1}], 0")
    p(f"v_mov_b32 v{MX}, s{sTAG}"); p(f"v_not_b32 v{MX}, v{MX}")
    p("s_barrier")
    p("s_branch F_PUB")
    p.label("F_CODE_END")
    p.resolve(a)
    return kernel_desc(name, 512, 92, 256)

from ftail import tail, tail_setup
```

```python
from fused import *
LB = int([x[3:] for x in sys.argv if x.startswith('lb=')][0]) if any(x.startswith('lb=') for x in sys.argv) else 10
NBR = LB + 1
FSL = int([x[4:] for x in sys.argv if x.startswith('fsl=')][0]) if any(x.startswith('fsl=') for x in sys.argv) else 8
OPTIM = int([x[6:] for x in sys.argv if x.startswith('optim=')][0]) if any(x.startswith('optim=') for x in sys.argv) else 8
AL_, VP, VX, VM, XT = 184, 196, 197, 198, XV
ACC = 40
AF = [128, 160]
X, WR, WG, WU, WD, GA, SB, GB, T = 120, 128, 136, 152, 168, 200, 216, 232, 24
CB, XF_, WRF, GT = 104, 72, 88, 40
T = 8

def tail_setup(p):
    for j in range(8): p(f"v_subrev_u32 v{AL_+j}, 0x10000, v{VA+j}")
    p(f"s_lshl_b32 s{sOR}, s{sKH}, 22"); p(f"s_lshl_b32 s{t1}, s{sRB}, 13"); p(f"s_add_u32 s{sOR}, s{sOR}, s{t1}")
    p(f"s_add_u32 s{sOR}, s{sOR}, s{sWL}"); p(f"s_add_u32 s{sOR}, s{sOR}, {WS_OF}")

def tail(p):
    p("; TMZ")
    p("; MARKG"); p("; TM0")
    NK = 32
    def bload(i):
        r = (i % NBR)*8
        return [I(f"buffer_load_dwordx4 {ar(r+4*g,4)}, v{XT}, {R(RWS)}, s{sOR} offen offset:{g*1024} sc1", v=('B', i)) for g in range(2)]
    bump = f"s_add_u32 s{sOR}, s{sOR}, 131072"
    def aread(i, nt):
        o = USL[i % 16]
        av = (AL_ if o < 65536 else VA) + nt; o %= 65536
        f = AF[i % 2] + nt*4
        return [I(f"ds_read_b64_tr_b16 {ar(f,2)}, v{av} offset:{o}", l=('A', i, nt)),
                I(f"ds_read_b64_tr_b16 {ar(f+2,2)}, v{av} offset:{o+4096}", l=('A', i, nt))]
    for i in range(LB):
        p(bload(i)); p(bump)
        if i == 1:
            for nt in range(8): p(aread(0, nt))
    owner_regs(p, VX, VM, VP)
    p(f"s_lshl_b32 s{t0}, s{sSLOT}, 15"); p(f"s_lshl_b32 s{t1}, s{sW}, 13"); p(f"s_add_u32 s{t0}, s{t0}, s{t1}")
    p(f"s_add_u32 s{t0}, s{t0}, {WS_PART1}"); p(f"s_add_u32 s{t1}, s{t0}, 4096")
    G0, G1, G2, G3 = 16, 17, 18, 19
    p(f"s_lshl_b32 s{G0}, s{sRB}, 19"); p(f"s_lshr_b32 s{G1}, s{sO}, 1"); p(f"s_lshl_b32 s{G1}, s{G1}, 12"); p(f"s_add_u32 s{G0}, s{G0}, s{G1}")
    p(f"s_and_b32 s{G1}, s{sO}, 1"); p(f"s_lshl_b32 s{G1}, s{G1}, 7"); p(f"s_add_u32 s{G0}, s{G0}, s{G1}")
    p(f"s_lshl_b32 s{G1}, s{sW}, 15"); p(f"s_add_u32 s{G0}, s{G0}, s{G1}"); p(f"s_add_u32 s{G0}, s{G0}, {WS_PART1}")
    p(f"s_add_u32 s{G1}, s{G0}, 131072"); p(f"s_add_u32 s{G2}, s{G0}, 262144"); p(f"s_add_u32 s{G3}, s{G0}, 393216")
    p(f"s_lshl_b32 s{t2}, s{sSLOT}, 7"); p(f"s_add_u32 s{t2}, s{t2}, {WS_F1}")
    p(f"s_lshl_b32 s{sG1}, s{sRB}, 11"); p(f"s_lshl_b32 s{t3}, s{sW}, 9"); p(f"s_add_u32 s{sG1}, s{sG1}, s{t3}")
    p(f"s_lshl_b32 s{t3}, s{sO}, 2"); p(f"s_add_u32 s{sG1}, s{sG1}, s{t3}"); p(f"s_add_u32 s{sG1}, s{sG1}, {WS_F1}")
    p("v_lshlrev_b32 v5, 7, v1"); p(f"v_mov_b32 v6, s{sTAG}")
    p(f"v_lshlrev_b32 v{FRV}, 2, v3")
    p(f"v_add_u32 v7, {LDS_MV}, v{VM}")
    pre_ops = [f"buffer_load_dwordx4 {vr(WD+4*i,4)}, v{XV}, {R(RD)}, s{sD0} offen offset:{i*1024}" for i in range(4)]
    acc_ops = [f"v_accvgpr_read_b32 v{WG+e}, a{aWG+e}" for e in range(32)]
    pre_ops += [f"buffer_load_dwordx2 {vr(X+2*k,2)}, v{VX}, {R(RX)}, s{sROW} offen offset:{cm(k)}" for k in range(4)]
    pre_ops += [f"buffer_load_dwordx2 {vr(WR+2*k,2)}, v{PFD+1}, {R(RWR)}, 0 offen offset:{cm(k)}" for k in range(4)]
    for i in range(NK):
        pre = []
        if i % 2 == 1 and i + 1 < NK and i >= 5: pre += [WV({('W', i+1), ('W', i+2), ('B', i)}), "s_barrier"]
        else: pre.append(WV({('B', i)}))
        pre.append(WL({('A', i, nt) for nt in range(4)}))
        p(pre)
        vm = bload(i + LB) if i + LB < NK else []
        dst = 10 + i
        dm = wo_unit(dst) if dst < NK else None
        m = 0
        for nt in range(8):
            for g in range(2):
                o = ACC + (g*8 + nt)*4
                p(f"{MFMA} {vr(o,4)}, {ar(AF[i%2]+nt*4,4)}, {ar((i%NBR)*8+g*4,4)}, {'0' if i == 0 else vr(o,4)}")
                if m == 7: p(WL({('A', i, n2) for n2 in range(4, 8)}))
                if g == 0 and i + 1 < NK: p(aread(i+1, nt))
                if m == 1 and dm: p(dm[0][0])
                if m == 3 and dm: p(dm[0][1])
                if m == 5 and dm: p(dm[1][1])
                if m == 9 and dm: p(dm[1][2])
                if m == 9 and vm: p(vm[0])
                if m == 11 and vm: p(vm[1])
                if m == 13 and vm: p(bump)
                if i >= 22 and m in (3, 7, 11) and pre_ops: p(pre_ops.pop(0), v='E')
                m += 1
    p("; MARKH"); p("; TM1")
    assert not pre_ops
    PK = 104
    MP2 = GA
    p("v_lshlrev_b32 v24, 5, v0")
    p(f"s_mov_b32 s3, {WS_MP + 4096}")
    for kq in range(4):
        for k in range(2): p(f"buffer_load_dwordx4 {vr(MP2+8*kq+4*k,4)}, v24, {R(RWS)}, s3 offen offset:{16*k} sc1")
        if kq < 3: p(f"s_add_u32 s3, s3, 12288")
    for g in range(2):
        for m in range(4):
            o = ACC + (g*8 + 2*m)*4
            d = PK + ((g*4 + m) % 4)*4
            for e in range(4): p(f"v_cvt_pk_bf16_f32 v{d+e}, v{o+2*e}, v{o+2*e+1}")
            p(f"buffer_store_dwordx4 {vr(d,4)}, v{XT}, {R(RWS)}, s{t0+g} offen offset:{m*1024} sc1")
    p(f"v_add_u32 v24, {LDS_MV}, v24")
    p(f"s_cmp_eq_u32 s{sW}, 2"); p(f"s_cselect_b32 s3, 1.0, 0")
    p("s_waitcnt vmcnt(8)")
    for k in range(4): unpack4(p, X+2*k, XF_+4*k)
    for k in range(4): unpack4(p, WR+2*k, WRF+4*k)
    for e in range(8):
        p(f"v_add_f32 v{MP2+e}, v{MP2+e}, v{MP2+8+e}"); p(f"v_add_f32 v{MP2+16+e}, v{MP2+16+e}, v{MP2+24+e}")
    for e in range(8): p(f"v_add_f32 v{MP2+e}, v{MP2+e}, v{MP2+16+e}")
    rnd_pairs(p, [MP2+e for e in range(8)])
    for e in range(8): p(f"v_add_f32 v{MP2+e}, s3, v{MP2+e}")
    rnd_pairs(p, [MP2+e for e in range(8)])
    p(f"ds_write_b128 v24, {vr(MP2,4)}"); p(f"ds_write_b128 v24, {vr(MP2+4,4)} offset:16")
    p("s_waitcnt vmcnt(0)")
    p("s_mov_b64 exec, 15")
    p(f"buffer_store_dword v6, v5, {R(RWS)}, s{sG1} offen sc1")
    p("s_mov_b64 exec, -1")
    p("; MARKi"); p("; TM2")
    for x in acc_ops: p(x)
    p("s_waitcnt lgkmcnt(0)")
    p("s_barrier")
    for base, idx in ((GA, 0), (SB, 1), (GB, 3), (CB, 2)):
        for k in range(4): p(f"ds_read_b128 {vr(base+4*k,4)}, v7 offset:{idx*2048 + 2*cm(k)}")
        if idx == 3: p("s_waitcnt lgkmcnt(8)")
    p("v_and_b32 v7, 7, v1"); p("v_lshlrev_b32 v5, 7, v7"); p(f"v_add_u32 v5, {LDS_SC}, v5"); p("v_lshl_add_u32 v6, v2, 5, v5")
    Z = 26
    p("s_waitcnt lgkmcnt(0)")
    p(f"v_mul_f32 v{Z+4}, v{SB}, v{WRF}")
    for e in range(1, 16): p(f"v_fmac_f32 v{Z+4}, v{SB+e}, v{WRF+e}")
    for e in range(16): p(f"v_mul_f32 v{WRF+e}, v{WRF+e}, v{CB+e}")
    p(f"v_add_f32 v{Z+3}, v{WRF}, v{WRF+1}")
    for e in range(2, 16): p(f"v_add_f32 v{Z+3}, v{Z+3}, v{WRF+e}")
    red_ror(p, [Z+3, Z+4], [24, 25], ['row_ror:8'])
    wait_tag_pipe(p, "F1W", lambda r: f"buffer_load_dword v{r}, v{FRV}, {R(RWS)}, s{t2} offen sc1", [MX, MX+1, MX+2, MX+3], PD, PS)
    p("; MARKh"); p("; TM3")
    for kq in range(4):
        for mm in range(2):
            p(f"buffer_load_dwordx4 {vr(GT+kq*8+mm*4,4)}, v{VP}, {R(RWS)}, s{(G0, G1, G2, G3)[kq]} offen offset:{mm*2048} sc1")
    R16 = [ACC+e for e in range(16)]
    D16 = [ACC+16+e for e in range(16)]
    S16 = 24
    for kq in range(4):
        p(f"s_waitcnt vmcnt({6-2*kq})")
        for e in range(8):
            src = GT + kq*8 + e
            if kq == 0:
                p(f"v_lshlrev_b32 v{T+2*e}, 16, v{src}"); p(f"v_and_b32 v{T+2*e+1}, 0xffff0000, v{src}")
            else:
                p(f"v_lshlrev_b32 v{S16}, 16, v{src}"); p(f"v_and_b32 v{src}, 0xffff0000, v{src}")
                p(f"v_add_f32 v{T+2*e}, v{T+2*e}, v{S16}"); p(f"v_add_f32 v{T+2*e+1}, v{T+2*e+1}, v{src}")
    p("s_waitcnt lgkmcnt(0)")
    p("; MARKI"); p("; TM4")
    for e in range(16): p(f"v_fma_f32 v{ACC+e}, v{T+e}, v{GA+e}, v{XF_+e}")
    for e in range(8): p(f"v_cvt_pk_bf16_f32 v{X+e}, v{ACC+2*e}, v{ACC+2*e+1}")
    for k in range(4): unpack4(p, X+2*k, ACC+4*k)
    p(f"v_add_f32 v{Z}, v{ACC}, v{ACC+1}"); p(f"v_mul_f32 v{Z+1}, v{ACC}, v{ACC}"); p(f"v_mul_f32 v{Z+2}, v{ACC}, v{WRF}")
    for e in range(1, 16):
        if e >= 2: p(f"v_add_f32 v{Z}, v{Z}, v{ACC+e}")
        p(f"v_fmac_f32 v{Z+1}, v{ACC+e}, v{ACC+e}"); p(f"v_fmac_f32 v{Z+2}, v{ACC+e}, v{WRF+e}")
    red_ror(p, [Z, Z+1, Z+2], [T, T+1, T+2], ['row_ror:8'])
    p(f"ds_write_b128 v6, {vr(Z,4)}"); p(f"ds_write_b32 v6, v{Z+4} offset:16")
    p(f"s_lshl_b32 s{t0}, s{sSLOT}, 3"); p(f"s_sub_u32 s{t0}, 2047, s{t0}"); p(f"v_sub_u32 v31, s{t0}, v7")
    p(f"s_lshl_b32 s{t0}, s{sSLOT}, 12"); p(f"s_add_u32 s{t0}, s{t0}, {WS_CROW}")
    p(f"s_lshl_b32 s{t1}, s{sSLOT}, 3"); p(f"s_add_u32 s{t1}, s{t1}, {WS_KEYS}")
    p("s_waitcnt lgkmcnt(0)")
    p("s_barrier")
    p("; TM11")
    U = ACC + 16
    for w in range(4):
        p(f"ds_read_b128 {vr(U+4*w,4)}, v5 offset:{w*32}"); p(f"ds_read_b32 v{T+w}, v5 offset:{w*32+16}")
    p("v_lshlrev_b32 v5, 11, v1")
    p("s_waitcnt lgkmcnt(0)")
    def sum4x2():
        p(f"v_add_f32 v{T}, v{T}, v{T+1}"); p(f"v_add_f32 v{T+2}, v{T+2}, v{T+3}")
        p(f"v_add_f32 v{T+4}, v{T+4}, v{T+5}"); p(f"v_add_f32 v{T+6}, v{T+6}, v{T+7}")
        p(f"v_add_f32 v{T}, v{T}, v{T+2}"); p(f"v_add_f32 v{T+4}, v{T+4}, v{T+6}")
    for e in range(4): p(f"v_add_f32 v{U+e}, v{U+e}, v{U+4+e}"); p(f"v_add_f32 v{U+8+e}, v{U+8+e}, v{U+12+e}")
    p(f"v_add_f32 v{T}, v{T}, v{T+1}"); p(f"v_add_f32 v{T+2}, v{T+2}, v{T+3}")
    for e in range(4): p(f"v_add_f32 v{Z+e}, v{U+e}, v{U+8+e}")
    p(f"v_add_f32 v{Z+4}, v{T}, v{T+2}")
    p(f"v_mul_f32 v{Z}, {f32(1/512)}, v{Z}"); p(f"v_mul_f32 v{Z+1}, {f32(1/512)}, v{Z+1}")
    p(f"v_fma_f32 v{Z+1}, -v{Z}, v{Z}, v{Z+1}"); p(f"v_max_f32 v{Z+1}, 0, v{Z+1}")
    rnd_bf16(p, Z); rnd_bf16(p, Z+1)
    p(f"v_add_f32 v{Z+1}, {f32(EPS)}, v{Z+1}"); rnd_bf16(p, Z+1)
    p(f"v_sqrt_f32 v{Z+1}, v{Z+1}")
    p(f"v_fma_f32 v{Z+2}, -v{Z}, v{Z+3}, v{Z+2}")
    rnd_bf16(p, Z+1)
    p(f"v_rcp_f32 v{Z+1}, v{Z+1}")
    p(f"v_mov_b32 v{T+3}, s{sTAG}")
    p(f"v_fma_f32 v{T}, v{Z+2}, v{Z+1}, v{Z+4}")
    p(f"v_mul_f32_e64 v{Z}, -v{Z}, v{Z+1}")
    rnd_bf16(p, T)
    p(f"v_ashrrev_i32 v{T+1}, 31, v{T}"); p(f"v_or_b32 v{T+1}, 0x80000000, v{T+1}"); p(f"v_xor_b32 v{T}, v{T}, v{T+1}")
    p(f"v_and_b32 v{T}, 0xffff0000, v{T}"); p(f"v_or_b32 v{T}, v{T}, v31")
    p(f"v_mov_b32 v{T+2}, v{T}")
    allreduce(p, [T+2], [T+1], op='v_max_u32', steps=(1, 2, 4))
    w0_only(p, "F2_sig")
    p("s_mov_b64 exec, 0xffff")
    p(f"buffer_store_dwordx2 {vr(T+2,2)}, v5, {R(RWS)}, s{t1} offen sc1")
    p("s_mov_b64 exec, -1")
    p.label("F2_sig")
    p(f"v_cmp_eq_u32 s[26:27], v{T}, v{T+2}")
    for e in range(16): p(f"v_fma_f32 v{ACC+16+e}, v{ACC+e}, v{Z+1}, v{Z}")
    for e in range(16): p(f"v_fma_f32 v{ACC+16+e}, v{ACC+16+e}, v{CB+e}, v{SB+e}")
    HG = XF_
    for k in range(4):
        p(f"v_cvt_pk_bf16_f32 v{HG+4*k}, v{ACC+16+4*k}, v{ACC+17+4*k}"); p(f"v_mov_b32 v{HG+4*k+1}, s{sTAG}")
        p(f"v_cvt_pk_bf16_f32 v{HG+4*k+2}, v{ACC+18+4*k}, v{ACC+19+4*k}"); p(f"v_mov_b32 v{HG+4*k+3}, s{sTAG}")
    p("s_mov_b64 exec, s[26:27]")
    for k in range(4): p(f"buffer_store_dwordx4 {vr(HG+4*k,4)}, v{VM}, {R(RWS)}, s{t0} offen offset:{2*cm(k)} sc1")
    p("s_mov_b64 exec, -1")
    for k in range(4):
        for h in range(2):
            p(f"v_lshlrev_b32 v{ACC+16+4*k+2*h}, 16, v{HG+4*k+2*h}"); p(f"v_and_b32 v{ACC+17+4*k+2*h}, 0xffff0000, v{HG+4*k+2*h}")
    for e in range(16): p(f"v_fma_f32 v{ACC+16+e}, v{ACC+16+e}, v{GB+e}, v{ACC+e}")
    OUTP = GA
    for e in range(8): p(f"v_cvt_pk_bf16_f32 v{OUTP+e}, v{ACC+16+2*e}, v{ACC+16+2*e+1}")
    p(f"v_lshrrev_b32 v30, 1, v{VM}")
    p(f"s_mov_b32 s{sG0}, s{t0}")
    def row_stores():
        p("s_mov_b64 exec, s[26:27]")
        for k in range(4): p(f"buffer_store_dwordx2 {vr(X+2*k,2)}, v30, {R(RWS)}, s{sG0} offen offset:{2048+cm(k)} sc1")
        for k in range(4): p(f"buffer_store_dwordx2 {vr(OUTP+2*k,2)}, v{VX}, {R(ROUT)}, s{sROW} offen offset:{cm(k)} sc1")
        p("s_not_b64 exec, s[26:27]")
        for k in range(4): p(f"buffer_store_dwordx2 {vr(OUTP+2*k,2)}, v{VX}, {R(ROUT)}, s{sROW} offen offset:{cm(k)}")
        p("s_mov_b64 exec, -1")
    def done_flag(lab):
        w0_only(p, lab)
        p("s_mov_b64 exec, 1")
        p(f"buffer_store_dword v28, v6, {R(RWS)}, s3 offen sc1")
        p("s_mov_b64 exec, -1")
        p.label(lab)
    p("; MARKJ"); p("; TM5")
    p(f"s_lshl_b32 s3, s{sSLOT}, 2"); p(f"s_add_u32 s3, s3, {WS_DONE}")
    p("v_mov_b32 v6, 0"); p(f"v_mov_b32 v29, {LDS_SC}"); p(f"v_mov_b32 v28, s{sTAG}")
    p(f"s_cmp_lt_u32 s2, {NFFN}"); p("s_cbranch_scc1 FT_go")
    row_stores()
    p(f"s_cmp_ge_u32 s2, {256 - NFIN}"); p("s_cbranch_scc1 FT_go")
    p("s_waitcnt vmcnt(0)"); p("s_barrier")
    done_flag("FD0")
    p("s_endpgm")
    p.label("FT_go")
    p(f"s_and_b32 s{t2}, s2, 15"); p(f"s_lshl_b32 s{t2}, s{t2}, 11"); p(f"s_add_u32 s{t2}, s{t2}, {WS_KEYS}")
    kl = [f"buffer_load_dwordx4 {vr(T+8,4)}, v{XT}, {R(RWS)}, s{t2} offen sc1", f"buffer_load_dwordx4 {vr(T+12,4)}, v{XT}, {R(RWS)}, s{t2} offen offset:1024 sc1"]
    UG, UD = 40, 208
    def dreg(i): return 104 + i if i < 16 else UD + i - 16
    w0_only(p, "F2_u")
    for l in kl: p(l)
    p.label("F2_u")
    for e in range(32):
        p(f"v_lshlrev_b32 v{UG+2*e}, 16, v{WG+e}"); p(f"v_and_b32 v{UG+2*e+1}, 0xffff0000, v{WG+e}")
    for e in range(16):
        p(f"v_lshlrev_b32 v{dreg(2*e)}, 16, v{WD+e}"); p(f"v_and_b32 v{dreg(2*e+1)}, 0xffff0000, v{WD+e}")
    w0_only(p, "F2_b")
    wait_tags(p, "F2W", kl, [T+9, T+11, T+13, T+15], slp=4, first_issued=True)
    p(f"v_max_u32 v{T+8}, v{T+8}, v{T+10}"); p(f"v_max3_u32 v{T+8}, v{T+8}, v{T+12}, v{T+14}")
    allreduce(p, [T+8], [T+9], op='v_max_u32')
    p(f"ds_write_b32 v29, v{T+8} offset:1024")
    p.label("F2_b")
    p("s_waitcnt vmcnt(0) lgkmcnt(0)")
    p("s_barrier")
    p("ds_read_b32 v4, v29 offset:1024")
    p("v_lshrrev_b32 v5, 1, v0"); p("v_lshlrev_b32 v5, 4, v5")
    p("s_waitcnt lgkmcnt(0)")
    p(f"v_readfirstlane_b32 s{sKEY}, v4")
    p(f"s_and_b32 s{sWROW}, s{sKEY}, 0x7ff"); p(f"s_sub_u32 s{sWROW}, 2047, s{sWROW}")
    p(f"s_lshr_b32 s{sWC}, s{sWROW}, 3"); p(f"s_lshl_b32 s{sWC}, s{sWC}, 12"); p(f"s_add_u32 s{sWC}, s{sWC}, {WS_CROW}")
    p("; MARKK"); p("; TM6")
    p(f"s_cmp_ge_u32 s2, {NFFN}"); p("s_cbranch_scc1 FT_FIN")
    rl = f"buffer_load_dwordx4 {vr(T+8,4)}, v5, {R(RWS)}, s{sWC} offen sc1"
    p(rl)
    row_stores()
    p("s_waitcnt vmcnt(12)")
    p(f"v_cmp_ne_u32 vcc, s{sTAG}, v{T+9}"); p(f"s_mov_b64 s[{t0}:{t1}], vcc"); p(f"v_cmp_ne_u32 vcc, s{sTAG}, v{T+11}"); p(f"s_or_b64 vcc, vcc, s[{t0}:{t1}]")
    p("s_cbranch_vccz FRW_ok")
    wait_tags(p, "FRW", [rl], [T+9, T+11])
    p.label("FRW_ok")
    p(f"v_lshlrev_b32 v{T}, 16, v{T+8}"); p(f"v_and_b32 v{T+1}, 0xffff0000, v{T+8}")
    p(f"v_lshlrev_b32 v{T+2}, 16, v{T+10}"); p(f"v_and_b32 v{T+3}, 0xffff0000, v{T+10}")
    p("; TM7")
    G8 = WG
    for i in range(4):
        for mm in range(2):
            for e in range(8):
                src = UG + mm*32 + i*8 + e
                p(f"v_mul_f32 v{G8+8*mm+e}, v{T+i}, v{src}" if i == 0 else f"v_fmac_f32 v{G8+8*mm+e}, v{T+i}, v{src}")
    for e in range(8): p(f"v_permlane32_swap_b32 v{G8+e}, v{G8+8+e}")
    for e in range(8): p(f"v_add_f32 v{G8+e}, v{G8+e}, v{G8+8+e}")
    for e in range(4): p(f"v_permlane16_swap_b32 v{G8+e}, v{G8+4+e}")
    for e in range(4): p(f"v_add_f32 v{G8+e}, v{G8+e}, v{G8+4+e}")
    p("v_and_b32 v6, 1, v1"); p("v_lshlrev_b32 v6, 5, v6")
    for ctl in ('quad_perm:[2,3,0,1]', 'row_ror:4', 'row_ror:8'):
        for e in range(4): p(f"v_add_f32_dpp v{G8+e}, v{G8+e}, v{G8+e} {ctl} row_mask:0xf bank_mask:0xf")
    p("v_lshrrev_b32 v5, 5, v1"); p("v_lshl_add_u32 v6, v5, 6, v6"); p("v_bfe_u32 v5, v1, 4, 1"); p("v_lshl_add_u32 v6, v5, 4, v6")
    p("v_lshl_add_u32 v6, v2, 7, v6")
    p(f"ds_write_b128 v6, {vr(G8,4)} offset:1024")
    p("v_lshlrev_b32 v5, 2, v3"); p("v_mov_b32 v6, 0")
    p("s_waitcnt vmcnt(0) lgkmcnt(0)")
    p("s_barrier")
    for w in range(4):
        p(f"ds_read_b32 v{T+w}, v5 offset:{1024+w*128}"); p(f"ds_read_b32 v{T+4+w}, v5 offset:{1024+w*128+64}")
    done_flag("FD1")
    p(f"s_lshl_b32 s{t0}, s{sW}, 2")
    p("s_waitcnt lgkmcnt(0)")
    sum4x2()
    rnd_bf16(p, T); rnd_bf16(p, T+4)
    p(f"v_mul_f32 v{T+1}, {f32(-LOG2E)}, v{T}"); p(f"v_exp_f32 v{T+1}, v{T+1}"); p("s_nop 0")
    p(f"v_add_f32 v{T+1}, 1.0, v{T+1}"); p(f"v_rcp_f32 v{T+1}, v{T+1}"); p("s_nop 0")
    p(f"v_mul_f32 v{T}, v{T}, v{T+1}"); rnd_bf16(p, T)
    p(f"v_mul_f32 v{T}, v{T}, v{T+4}"); rnd_bf16(p, T)
    p("s_nop 0")
    for i in range(4):
        p(f"v_readlane_b32 s{16+i}, v{T}, s{t0}")
        if i < 3: p(f"s_add_u32 s{t0}, s{t0}, 1")
    p.nop(2)
    for i in range(4):
        for e in range(8):
            p(f"v_mul_f32 v{ACC+e}, s{16+i}, v{dreg(i*8+e)}" if i == 0 else f"v_fmac_f32 v{ACC+e}, s{16+i}, v{dreg(i*8+e)}")
    p("v_lshlrev_b32 v5, 5, v0")
    p(f"ds_write_b128 v5, {vr(ACC,4)} offset:8192"); p(f"ds_write_b128 v5, {vr(ACC+4,4)} offset:8208")
    p("v_lshlrev_b32 v6, 3, v0")
    p("s_waitcnt lgkmcnt(0)")
    p("s_barrier")
    for w in range(4): p(f"ds_read_b64 {vr(T+2*w,2)}, v6 offset:{8192+w*2048}")
    p(f"s_lshl_b32 s{t0}, s2, 12"); p(f"s_add_u32 s{t0}, s{t0}, {WS_PART2}")
    p("v_lshlrev_b32 v6, 4, v0")
    p(f"v_mov_b32 v{T+9}, s{sTAG}"); p(f"v_mov_b32 v{T+11}, s{sTAG}")
    p("s_waitcnt lgkmcnt(0)")
    for e in range(2):
        p(f"v_add_f32 v{T+e}, v{T+e}, v{T+2+e}"); p(f"v_add_f32 v{T+4+e}, v{T+4+e}, v{T+6+e}")
    for e in range(2): p(f"v_add_f32 v{T+8+2*e}, v{T+e}, v{T+4+e}")
    p(f"buffer_store_dwordx4 {vr(T+8,4)}, v6, {R(RWS)}, s{t0} offen sc1")
    p("; TM8")
    p("s_endpgm")
    p.label("FT_FIN")
    done_flag("FD2")
    p(f"s_sub_u32 s{sFF}, s2, {256 - NFIN}")
    p("v_and_b32 v5, 7, v0"); p("v_lshlrev_b32 v7, 2, v5"); p("v_lshlrev_b32 v24, 3, v5")
    p("v_lshrrev_b32 v25, 3, v0"); p("v_lshlrev_b32 v25, 12, v25"); p("v_lshl_add_u32 v25, v5, 4, v25")
    p(f"s_lshl_b32 s{t1}, s{sFF}, 6")
    p(f"v_add_u32 v26, s{t1}, v24"); p(f"v_add_u32 v26, {LDS_MV + 3*2048}, v26")
    p(f"ds_read_b64 {vr(GB,2)}, v26")
    p(f"s_and_b32 s{t0}, s{sKEY}, 0xffff0000"); p(f"s_ashr_i32 s{t1}, s{t0}, 31"); p(f"s_not_b32 s{t1}, s{t1}")
    p(f"s_or_b32 s{t1}, s{t1}, 0x80000000"); p(f"s_xor_b32 s{t0}, s{t0}, s{t1}"); p(f"s_and_b32 s{t0}, s{t0}, 0xffff0000")
    p(f"v_mov_b32 v27, s{t0}")
    p(f"v_mul_f32 v27, {f32(-LOG2E)}, v27"); p("v_exp_f32 v27, v27"); p("s_nop 0")
    p("v_add_f32 v27, 1.0, v27"); p("v_rcp_f32 v27, v27"); p("s_nop 0")
    rnd_bf16(p, 27)
    w0_only(p, "FDW_done")
    p(f"s_lshr_b32 s{t2}, s{sWROW}, 3"); p(f"s_lshl_b32 s{t2}, s{t2}, 2"); p(f"s_add_u32 s{t2}, s{t2}, {WS_DONE}")
    wait_tags(p, "FDW", [f"buffer_load_dword v31, v6, {R(RWS)}, s{t2} offen sc1"], [31], slp=4)
    p(f"s_lshl_b32 s{t0}, s{sFF}, 6"); p(f"s_add_u32 s{t0}, s{t0}, s{sWC}")
    p(f"s_lshl_b32 s{t1}, s{sFF}, 5"); p(f"s_add_u32 s{t1}, s{t1}, s{sWC}")
    p(f"buffer_load_dword v{X}, v24, {R(RWS)}, s{t0} offen sc1")
    p(f"buffer_load_dword v{X+1}, v7, {R(RWS)}, s{t1} offen offset:2048 sc1")
    p.label("FDW_done")
    p(f"s_lshl_b32 s{sROW}, s{sFF}, 7"); p(f"s_add_u32 s{sROW}, s{sROW}, {WS_PART2}")
    p(f"s_add_u32 s{sG0}, s{sROW}, {32*4096}"); p(f"s_add_u32 s{sG1}, s{sROW}, {64*4096}"); p(f"s_add_u32 s{sO}, s{sROW}, {96*4096}")
    p(f"s_cmp_lt_u32 s{sW}, 2"); p(f"s_cselect_b32 s{sO}, s{sO}, s{sG1}"); p(f"s_cselect_b32 s{sCB}, 1.0, 0")
    p("; TM9")
    p(f"s_sleep {FSL}")
    wait_tags(p, "F3W", [f"buffer_load_dwordx4 {vr(ACC+4*i,4)}, v25, {R(RWS)}, s{sr_} offen sc1" for i, sr_ in enumerate((sROW, sG0, sG1, sO))],
              [ACC+1+2*i for i in range(8)], slp=2)
    p("; TM10")
    for e in (0, 2):
        p(f"v_add_f32 v{ACC+e}, v{ACC+e}, v{ACC+4+e}"); p(f"v_fma_f32 v{ACC+8+e}, v{ACC+12+e}, s{sCB}, v{ACC+8+e}")
    for e in (0, 2): p(f"v_add_f32 v{ACC+e//2}, v{ACC+e}, v{ACC+8+e}")
    red_ror(p, [ACC, ACC+1], [ACC+4, ACC+5], ['row_ror:8'])
    p("v_lshl_add_u32 v6, v2, 6, v24")
    p(f"ds_write_b64 v6, {vr(ACC,2)} offset:1024")
    p("s_waitcnt lgkmcnt(0)")
    p("s_barrier")
    p("v_cmp_gt_u32 vcc, 8, v0")
    p("s_and_saveexec_b64 s[26:27], vcc")
    p("s_cbranch_execz F_END")
    for w in range(4): p(f"ds_read_b64 {vr(ACC+2*w,2)}, v24 offset:{1024+w*64}")
    unpack4(p, X, ACC+16)
    p("s_waitcnt lgkmcnt(0)")
    for e in range(2):
        p(f"v_add_f32 v{ACC+e}, v{ACC+e}, v{ACC+2+e}"); p(f"v_add_f32 v{ACC+4+e}, v{ACC+4+e}, v{ACC+6+e}")
    R2 = [ACC, ACC+1]
    for e in range(2): p(f"v_add_f32 v{ACC+e}, v{ACC+e}, v{ACC+4+e}")
    rnd_pairs(p, R2)
    for e in range(2): p(f"v_mul_f32 v{ACC+e}, v{ACC+e}, v27")
    rnd_pairs(p, R2)
    for e in range(2): p(f"v_add_f32 v{ACC+e}, v{ACC+e}, v{ACC+16+e}")
    rnd_pairs(p, R2)
    for e in range(2): p(f"v_mul_f32 v{ACC+e}, v{ACC+e}, v{GB+e}")
    rnd_pairs(p, R2)
    for e in range(2): p(f"v_add_f32 v{ACC+e}, v{ACC+e}, v{ACC+18+e}")
    p(f"v_cvt_pk_bf16_f32 v{ACC}, v{ACC}, v{ACC+1}")
    p(f"s_lshl_b32 s{t0}, s{sWROW}, 10"); p(f"s_lshl_b32 s{t1}, s{sFF}, 5"); p(f"s_add_u32 s{t0}, s{t0}, s{t1}")
    p(f"buffer_store_dword v{ACC}, v7, {R(ROUT)}, s{t0} offen")
    p("s_cmp_lg_u32 s2, 255"); p("s_cbranch_scc1 F_END")
    p(f"v_mov_b32 v4, s{sTAG}"); p(f"v_mov_b32 v5, {WS_EPOCH}")
    p("s_mov_b64 exec, 1")
    p(f"buffer_store_dword v4, v5, {R(RWS)}, 0 offen")
```

```python
import sys, math
from asmlib import *
from sched import *
from k0 import rnd_bf16, unpack8, rnd_pairs
from common import NAME, CS, EPS, KA_X, KA_WU, KA_OUT, KA_WS
LOG2E = math.log2(math.e)
MFMA = "v_mfma_f32_16x16x32_bf16"
OPT = set(sys.argv)
WS_EPOCH, WS_F0X, WS_F0M, WS_FO, WS_F1, WS_F3, WS_F0R, WS_KEYS, WS_MP = 0, 0x1000, 0x3000, 0x5000, 0x5800, 0x6000, 0x7000, 0x8000, 0x10000
WS_CROW, WS_PART2, WS_XF, WS_OF, WS_PART1, WS_SIZE = 0x300000, 0x400000, 0x100000, 0x800000, 0x1800000, 0x2000000
WS_DONE = WS_F3
WS_FO, WS_F1 = 0x20000, 0x28000
NFIN = 32
sOR = 86
NFFN = 112
SPIN = 1 << 18
def optv(k, d): return int([x[len(k)+1:] for x in sys.argv if x.startswith(k + '=')][0]) if any(x.startswith(k + '=') for x in sys.argv) else d
PD, PS = optv('pd', 1), optv('ps', 2)
XLA = int([x[4:] for x in sys.argv if x.startswith('xla=')][0]) if any(x.startswith('xla=') for x in sys.argv) else 4
SLP = int([x[4:] for x in sys.argv if x.startswith('slp=')][0]) if any(x.startswith('slp=') for x in sys.argv) else 1
WQTH = int([x[5:] for x in sys.argv if x.startswith('wqth=')][0]) if any(x.startswith('wqth=') for x in sys.argv) else 24
LDS_V = 65536
LDS_MQ = 131072
LDS_VOTE = LDS_MQ + 4096
USL = [8192*x for x in (1, 2, 3, 4, 8, 9, 5, 6, 10, 11, 0, 7, 12, 13, 14, 15)]
LDS_SC = 139264
LDS_MV = 155648
F_LDS = 163840
WQ_REGION = [0, 16384, 65536, 32768, 81920, 49152, 98304, 114688]
KA, VA, DK, DV, WA, WAH, DW, XV, MA, XX, FRV = 8, 12, 20, 22, 24, 28, 32, 33, 34, 39, 35
Q = 40
S = [104, 136]
P = [168, 184]
NEG, LS, ONES, TMP = 200, 216, 232, 236
DWO, PFD, MX = 244, 248, 252
XR, HB, MQ = 40, [168, 184], [200, 216]
FSET = [128, 160]
VSUM = () if 'nomix' in OPT else (0, 2)
NT_ = 8 if 'nomix' in OPT else 12
RK, RV, RWQ, RWS, RX, RWO, RPF, RA, RB, RG, RU = 32, 36, 40, 44, 48, 52, 56, 60, 64, 68, 72
RD, ROUT, RWR = 20, 60, 64
aWG, aWU, aWD, aX, aWR = 192, 208, 224, 240, 248
sG0, sG1, sD0 = 12, 13, 15
sW, sH, sQB, sTAG, sK, sV, sWL, sXO, sCNT, sWO, sPW, sPF = 76, 77, 78, 79, 80, 81, 82, 83, 84, 85, 86, 87
t0, t1, t2, t3 = 88, 89, 90, 91
sKH, sRB, sCB, sO, sSLOT, sROW, sW4, sOF, sFF, sKEY, sWROW, sWC = 4, 5, 6, 7, 8, 9, 10, 11, 14, 15, 24, 25
def R(n): return f"s[{n}:{n+3}]"

def kfrag_reads(fs, j, unit):
    kt, st = j // 4, j % 4
    f = FSET[fs] + 4*j
    return [I(f"ds_read_b128 a[{f}:{f+3}], v{KA+st} offset:{(unit % 8)*8192 + kt*4096}", l=('K', unit, j))]
def vfrag_reads(fs, j, unit):
    f = FSET[fs] + 4*j
    o = (unit % 8)*8192
    return [I(f"ds_read_b64_tr_b16 a[{f}:{f+1}], v{VA+j} offset:{o}", l=('V', unit, j)),
            I(f"ds_read_b64_tr_b16 a[{f+2}:{f+3}], v{VA+j} offset:{o+4096}", l=('V', unit, j))]
def qk_half(fs, sb, czero=False):
    mf = []
    order = [(kt, g, st) for kt in range(2) for g in range(4) for st in range(4)] if 'nochain' not in OPT else \
            [(kt, g, st) for kt in range(2) for st in range(4) for g in range(4)]
    for i, (kt, g, st) in enumerate(order):
        f = FSET[fs] + 4*(kt*4 + st)
        d = S[sb] + g*8 + kt*4
        q = Q + (g*4 + st)*4
        c = ('0' if czero else vr(NEG + g*4, 4)) if st == 0 else vr(d, 4)
        mf.append((f"{MFMA} {vr(d,4)}, a[{f}:{f+3}], {vr(q,4)}, {c}", (i // 4, i % 4)))
    return mf
def pv_half(fs, pb, czero=False, allsum=False):
    mf = []
    for j in range(8):
        f = FSET[fs] + 4*j
        for g in range(4):
            o = (j*4 + g)*4
            p = P[pb] + g*4
            mf.append((f"{MFMA} {ar(o,4)}, a[{f}:{f+3}], {vr(p,4)}, {'0' if czero else ar(o,4)}", (j, g)))
        if j % 2 == 1 and (allsum or (j // 2) not in VSUM):
            g = j // 2
            p = P[pb] + g*4
            mf.append((f"{MFMA} {vr(LS+g*4,4)}, {vr(ONES,4)}, {vr(p,4)}, {'0' if czero else vr(LS+g*4,4)}", None))
    return mf
def tmpr(i): return TMP + i % 8 if NT_ == 8 else (TMP + i % 12 if i % 12 < 8 else MX + i % 12 - 8)
def sm_stream(sb, pb, first=False):
    st = []
    def post(i):
        o = []
        g = i // 8
        if g in VSUM:
            acc = LS + g*4 + (i % 2)
            o.append((f"v_mov_b32 v{acc}, v{tmpr(i)}" if (first and i % 8 < 2) else f"v_add_f32 v{acc}, v{acc}, v{tmpr(i)}", 4))
        if i % 2 == 1: o.append((f"v_cvt_pk_bf16_f32 v{P[pb]+i//2}, v{tmpr(i-1)}, v{tmpr(i)}", 4))
        return o
    for i in range(32):
        st.append((f"v_exp_f32 v{tmpr(i)}, v{S[sb]+i}", 8))
        if i >= 1: st += post(i-1)
    st += post(31)
    return st
def dma_unit(kind, unit):
    base = (unit % 8)*8192 + (0 if kind == 'K' else LDS_V)
    srdn, sreg, vo = ((RK, sK, DK) if kind == 'K' else (RV, sV, DV))
    tag = (kind, unit)
    return [(f"s_add_u32 m0, s{sWL}, {base}", I(f"buffer_load_dwordx4 v{vo}, {R(srdn)}, s{sreg} offen lds", v=tag), None),
            (None, I(f"buffer_load_dwordx4 v{vo+1}, {R(srdn)}, s{sreg} offen offset:1024 lds", v=tag), f"s_add_u32 s{sreg}, s{sreg}, 8192")]
def wo_unit(k):
    return [(f"s_add_u32 m0, s{sWL}, {USL[k % 16]}", I(f"buffer_load_dwordx4 v{DWO}, {R(RWO)}, s{sWO} offen lds", v=('W', k)), None),
            (None, I(f"buffer_load_dwordx4 v{DWO+1}, {R(RWO)}, s{sWO} offen offset:1024 lds", v=('W', k)), f"s_add_u32 s{sWO}, s{sWO}, 32768")]
def dma_plain(p, ops):
    for (sb, mem, sa) in ops:
        if sb: p(sb); p("s_nop 0")
        p(mem)
        if sa: p(sa)
def block(halves, dmas=()):
    mf = []; gaps = []; pos = {}
    for hi, (m, usetag, pf) in enumerate(halves):
        for (t, jg) in m:
            if jg is not None: pos[(hi,) + jg] = len(mf)
            mf.append(t); gaps.append(Gap())
    pre = []
    for hi, (m, usetag, pf) in enumerate(halves):
        for j in range(8):
            if pf is not None:
                g = gaps[pos[(hi, j, 0)]]
                for r in pf(j): g.mem.append(r); g.used += 4
            if j % 4 == 0:
                w = WL({usetag + (jj,) for jj in range(j, j+4)})
                i = pos[(hi, j, 0)]
                if i == 0: pre.append(w)
                else: gaps[i-1].salu.append(w)
    if len(halves) == 1: slots = [(0, 1), (0, 2), (0, 5), (0, 6)]
    elif len(dmas) <= 4: slots = [(0, 1), (0, 5), (1, 1), (1, 5)]
    else: slots = [(0, 1), (0, 2), (0, 5), (0, 6), (1, 1), (1, 2), (1, 5), (1, 6)]
    assert len(dmas) <= len(slots)
    for (sb, mem, sa), hj in zip(dmas, slots):
        if sb: gaps[pos[hj + (1,)]].salu.append(sb)
        g = gaps[pos[hj + (2,)]]
        g.mem.append(mem); g.used += 8
        if sa: gaps[pos[hj + (3,)]].salu.append(sa)
    return pre, mf, gaps, pos
def tile_max(p, extra=None):
    for g in range(4):
        b = S[0] + g*8
        p(f"v_max3_f32 v{TMP+g}, v{b}, v{b+1}, v{b+2}")
        p(f"v_max3_f32 v{TMP+g}, v{TMP+g}, v{b+3}, v{b+4}")
        p(f"v_max3_f32 v{TMP+g}, v{TMP+g}, v{b+5}, v{b+6}")
        if extra is None: p(f"v_max_f32 v{TMP+g}, v{TMP+g}, v{b+7}")
        else: p(f"v_max3_f32 v{TMP+g}, v{TMP+g}, v{b+7}, v{extra+g}")
    allreduce(p, [TMP+g for g in range(4)], [TMP+4+g for g in range(4)], op='v_max_f32', steps=(16, 32))
def unpack4(p, src, dst):
    for i in range(2):
        p(f"v_lshlrev_b32 v{dst+2*i}, 16, v{src+i}")
        p(f"v_and_b32 v{dst+2*i+1}, 0xffff0000, v{src+i}")
def red_ror(p, regs, tmps, rors, op='v_add_f32'):
    n = len(regs)
    for ro in rors:
        p.nop(max(0, 3 - n) if ro != rors[0] else 2)
        for r in regs: p(f"{op}_dpp v{r}, v{r}, v{r} {ro} row_mask:0xf bank_mask:0xf")
    allreduce(p, regs, tmps, op=op, steps=(16, 32))
def mksrd(p, d, base, nbytes):
    p(f"s_mov_b32 s{d}, s{base}"); p(f"s_mov_b32 s{d+1}, s{base+1}"); p(f"s_mov_b32 s{d+2}, {nbytes}"); p(f"s_mov_b32 s{d+3}, 0x20000")
def mksrd_off(p, d, base, soff, nbytes):
    p(f"s_add_u32 s{d}, s{base}, s{soff}"); p(f"s_addc_u32 s{d+1}, s{base+1}, 0"); p(f"s_mov_b32 s{d+2}, {nbytes}"); p(f"s_mov_b32 s{d+3}, 0x20000")

def wait_tags(p, lab, loads, regs, execmask=None, slp=None, first_issued=False):
    p(f"s_mov_b32 s{t3}, {SPIN}")
    if execmask: p(f"s_mov_b64 exec, {execmask}")
    if first_issued: p(f"s_branch {lab}_chk")
    p.label(f"{lab}_loop")
    for l in loads: p(l)
    if first_issued: p.label(f"{lab}_chk")
    p("s_waitcnt vmcnt(0)")
    p(f"v_cmp_ne_u32 vcc, s{sTAG}, v{regs[0]}")
    for r in regs[1:]:
        p(f"v_cmp_ne_u32 s[2:3], s{sTAG}, v{r}") if False else None
    for r in regs[1:]:
        p(f"v_cmp_ne_u32 s[92:93], s{sTAG}, v{r}") if False else None
    for r in regs[1:]:
        p(f"s_mov_b64 s[{t0}:{t1}], vcc")
        p(f"v_cmp_ne_u32 vcc, s{sTAG}, v{r}")
        p(f"s_or_b64 vcc, vcc, s[{t0}:{t1}]")
    p(f"s_sub_u32 s{t3}, s{t3}, 1")
    p(f"s_cbranch_scc1 {lab}_out")
    p(f"s_cbranch_vccz {lab}_out")
    p(f"s_sleep {slp or SLP}")
    p(f"s_branch {lab}_loop")
    p.label(f"{lab}_out")
    if execmask: p("s_mov_b64 exec, -1")
def wait_tag_pipe(p, lab, mk, regs, depth, slp):
    p(f"s_mov_b32 s{t3}, {SPIN}")
    for d in range(depth - 1):
        p(mk(regs[d])); p(f"s_sleep {slp}")
    p.label(f"{lab}_loop")
    for d in range(depth):
        p(mk(regs[(d + depth - 1) % depth]))
        p(f"s_waitcnt vmcnt({depth - 1})")
        p(f"v_cmp_ne_u32 vcc, s{sTAG}, v{regs[d]}")
        p(f"s_cbranch_vccz {lab}_out")
        p(f"s_sleep {slp}")
    p(f"s_sub_u32 s{t3}, s{t3}, 1")
    p(f"s_cbranch_scc0 {lab}_loop")
    p.label(f"{lab}_out")
def w0_only(p, lab):
    p(f"s_cmp_lg_u32 s{sW}, 0"); p(f"s_cbranch_scc1 {lab}")
def set_flag(p, lab, instr, execmask):
    p("s_waitcnt vmcnt(0)")
    p("s_barrier")
    w0_only(p, f"{lab}_sig")
    p(f"s_mov_b64 exec, {execmask}")
    p(instr)
    p("s_mov_b64 exec, -1")
    p.label(f"{lab}_sig")

def addr_regs(p):
    for s_ in range(4):
        p(f"v_add_u32 v5, {4*s_}, v4"); p("v_xor_b32 v5, v5, v3"); p("v_lshlrev_b32 v5, 4, v5")
        p(f"v_lshl_add_u32 v{KA+s_}, v3, 8, v5")
    p("v_lshrrev_b32 v6, 2, v3"); p("v_lshl_add_u32 v7, v4, 2, v6")
    p("v_and_b32 v36, 7, v7"); p("v_lshlrev_b32 v36, 1, v36"); p("v_bfe_u32 v37, v3, 1, 1")
    p("v_and_b32 v38, 1, v3"); p("v_lshlrev_b32 v38, 3, v38"); p("v_lshl_add_u32 v38, v7, 8, v38"); p(f"v_add_u32 v38, {LDS_V}, v38")
    for dt in range(8):
        p(f"v_add_u32 v5, {2*dt}, v37"); p("v_xor_b32 v5, v5, v36"); p(f"v_lshl_add_u32 v{VA+dt}, v5, 4, v38")
    p("v_lshl_add_u32 v7, v2, 3, v4")
    for i in range(2):
        p(f"v_add_u32 v5, {4*i}, v7"); p("v_and_b32 v5, 15, v5"); p("v_xor_b32 v5, v5, v3"); p("v_lshlrev_b32 v5, 4, v5")
        p(f"v_lshl_add_u32 v{DK+i}, v7, 8, v5")
        p(f"v_add_u32 v5, {4*i}, v4"); p("v_lshlrev_b32 v5, 1, v5"); p("v_xor_b32 v5, v5, v3"); p("v_lshlrev_b32 v5, 4, v5")
        p(f"v_lshl_add_u32 v{DV+i}, v7, 8, v5")
    p("v_lshl_add_u32 v7, v4, 3, v6"); p("v_and_b32 v36, 3, v3")
    for s_ in range(4):
        p(f"v_xor_b32 v5, {s_}, v6"); p("v_lshl_add_u32 v5, v5, 2, v36"); p("v_lshlrev_b32 v5, 4, v5")
        p(f"v_lshl_add_u32 v{WA+s_}, v7, 8, v5"); p(f"v_add_u32 v{WAH+s_}, 0x10000, v{WA+s_}")
    p(f"v_lshlrev_b32 v{MA}, 6, v4"); p(f"v_add_u32 v{MA}, {LDS_MQ}, v{MA}")
    for r in range(4): p(f"v_mov_b32 v{ONES+r}, 0x3f803f80")
    p("v_lshl_add_u32 v7, v2, 3, v4"); p("v_mul_u32_u24 v7, 768, v7")
    for i in range(2): p(f"v_add_u32 v{DWO+i}, v{DV+i}, v7")
    p(f"v_add_u32 v{DWO+1}, 3072, v{DWO+1}")
    owner_regs(p, PFD, PFD+1, PFD+3)
    p(f"v_lshrrev_b32 v{PFD+1}, 1, v{PFD+1}")
    p("v_lshrrev_b32 v5, 1, v0"); p(f"v_mul_u32_u24 v5, 14336, v5"); p("v_and_b32 v6, 1, v0"); p(f"v_lshl_add_u32 v{PFD+2}, v6, 4, v5")

def cm(k): return (k // 2)*128 + (k % 2)*32
def owner_regs(p, VX, VM, VP):
    p("v_lshrrev_b32 v5, 5, v1"); p("v_bfe_u32 v6, v1, 3, 2"); p("v_and_b32 v7, 7, v1")
    p(f"v_lshlrev_b32 v{VP}, 10, v5"); p(f"v_lshl_add_u32 v{VP}, v6, 8, v{VP}"); p(f"v_lshl_add_u32 v{VP}, v7, 4, v{VP}")
    p("v_lshl_add_u32 v5, v5, 3, v6")
    p(f"v_lshlrev_b32 v{VM}, 4, v5"); p(f"v_lshl_add_u32 v{VM}, v2, 9, v{VM}")
    p(f"v_lshrrev_b32 v5, 1, v{VM}"); p(f"v_lshl_add_u32 v{VX}, v7, 10, v5")

def late_setup(p):
    p(f"s_lshl_b32 s{t0}, s{sH}, 19")
    mksrd_off(p, RK, 6, t0, 0x80000); mksrd_off(p, RV, 8, t0, 0x80000)
    p(f"s_bfe_u32 s{t1}, s2, 0x20001")
    p(f"s_lshl_b32 s{t0}, s{t1}, 20")
    mksrd_off(p, RWO, 12, t0, 1024*512*2)
    p(f"s_lshr_b32 s{sPW}, s2, 3"); p(f"s_lshl_b32 s{sPW}, s{sPW}, 15"); p(f"s_lshl_b32 s{t0}, s{sW}, 13"); p(f"s_add_u32 s{sPW}, s{sPW}, s{t0}")
    p(f"s_mul_i32 s{sPF}, s2, 7168")
    p(f"s_cmp_eq_u32 s{sW}, 0"); p(f"s_cselect_b32 s{RPF}, s18, s20"); p(f"s_cselect_b32 s{RPF+1}, s19, s21")
    p(f"s_cmp_eq_u32 s{sW}, 2"); p(f"s_cselect_b32 s{RPF}, s22, s{RPF}"); p(f"s_cselect_b32 s{RPF+1}, s23, s{RPF+1}")
    p(f"s_cmp_eq_u32 s{sW}, 3"); p(f"s_cselect_b32 s{RPF+2}, 0, {512*1792*2}"); p(f"s_mov_b32 s{RPF+3}, 0x20000")
    p(f"s_cmp_lt_u32 s2, {NFFN}"); p(f"s_cselect_b32 s{t0}, {512*1792*2}, 0")
    for d, b in ((RG, 18), (RU, 20)):
        p(f"s_mov_b32 s{d}, s{b}"); p(f"s_mov_b32 s{d+1}, s{b+1}"); p(f"s_mov_b32 s{d+2}, s{t0}"); p(f"s_mov_b32 s{d+3}, 0x20000")
    p("s_mov_b32 s20, s22"); p("s_mov_b32 s21, s23"); p(f"s_mov_b32 s22, s{t0}"); p("s_mov_b32 s23, 0x20000")
    mksrd(p, ROUT, 28, 2048*512*2); mksrd(p, RWR, 16, 1024)
    p(f"s_mov_b32 s{sK}, 0"); p(f"s_mov_b32 s{sV}, 0")
    p(f"s_lshl_b32 s{sWL}, s{sW}, 11")
    p(f"s_mov_b32 s{sKH}, s{t1}")
    p(f"s_and_b32 s{sRB}, s2, 1"); p(f"s_lshl_b32 s{sRB}, s{sRB}, 3"); p(f"s_lshr_b32 s{t0}, s2, 5"); p(f"s_add_u32 s{sRB}, s{sRB}, s{t0}")
    p(f"s_bfe_u32 s{sCB}, s2, 0x20003")
    p(f"s_lshl_b32 s{sW4}, s{sW}, 12")
    p(f"s_lshl_b32 s{sWO}, s{sCB}, 8")
    p(f"s_lshl_b32 s{sXO}, s{sQB}, 4"); p(f"s_lshl_b32 s{t0}, s{sW}, 2"); p(f"s_add_u32 s{sXO}, s{sXO}, s{t0}")
    p(f"s_lshl_b32 s{sXO}, s{sXO}, 10")
    p(f"s_lshl_b32 s{sOF}, s{sH}, 19"); p(f"s_add_u32 s{sOF}, s{sOF}, s{sXO}"); p(f"s_add_u32 s{sOF}, s{sOF}, {WS_OF}")
    p(f"s_add_u32 s{sXO}, s{sXO}, {WS_XF}")
    p(f"s_lshl_b32 s{sO}, s{sKH}, 2"); p(f"s_add_u32 s{sO}, s{sO}, s{sCB}")
    p(f"s_lshl_b32 s{sSLOT}, s{sRB}, 4"); p(f"s_add_u32 s{sSLOT}, s{sSLOT}, s{sO}")
    p(f"s_lshl_b32 s{sROW}, s{sSLOT}, 13")
    p(f"s_and_b32 s{sFF}, s2, 7"); p(f"s_mul_i32 s{sFF}, s{sFF}, 14"); p(f"s_lshr_b32 s{t0}, s2, 3"); p(f"s_add_u32 s{sFF}, s{sFF}, s{t0}")
    p(f"s_lshl_b32 s{sG0}, s{sFF}, 5"); p(f"s_add_u32 s{sG1}, s{sG0}, 7168")
    p(f"s_lshl_b32 s{sD0}, s{sFF}, 14"); p(f"s_add_u32 s{sD0}, s{sD0}, s{sW4}")

def eload(p):
    p(f"buffer_load_dword v35, off, {R(RWS)}, 0 offset:{WS_EPOCH} sc1")
def mktag(p, n):
    p(f"s_waitcnt vmcnt({n})")
    p(f"v_readfirstlane_b32 s{sTAG}, v35")
    p(f"s_mul_i32 s{sTAG}, s{sTAG}, 0x9E3779B1")
    p(f"s_add_u32 s{sTAG}, s{sTAG}, 0x7F4A7C15")

def fused(a, name):
    kernel_begin(a, name)
    p = Prog()
    saved = {}
    p("s_cmp_ge_u32 s2, 256")
    p("s_cbranch_scc1 F_END")
    p("s_load_dwordx16 s[4:19], s[0:1], 0")
    p(f"s_load_dwordx8 s[20:27], s[0:1], {KA_WU}")
    p(f"s_load_dwordx2 s[28:29], s[0:1], {KA_OUT}")
    p(f"s_load_dwordx2 s[30:31], s[0:1], {KA_WS}")
    p("v_and_b32 v1, 63, v0")
    p("v_lshrrev_b32 v2, 6, v0")
    p("v_and_b32 v3, 15, v1")
    p(f"v_readfirstlane_b32 s{sW}, v2")
    p("v_lshrrev_b32 v4, 4, v1")
    p(f"s_and_b32 s{sH}, s2, 7"); p(f"s_lshl_b32 s{sH}, s{sH}, 2"); p(f"s_bfe_u32 s{t0}, s2, 0x20003"); p(f"s_add_u32 s{sH}, s{sH}, s{t0}")
    p(f"s_lshr_b32 s{sQB}, s2, 5")
    p(f"v_lshlrev_b32 v{XV}, 4, v1")
    p(f"s_cmp_eq_u32 s{sW}, 1"); p("s_cbranch_scc1 F_MOD")
    p(f"s_cmp_eq_u32 s{sW}, 3"); p("s_cbranch_scc1 F_WQ")
    X0, XF32 = 40, 56
    p("v_and_b32 v5, 3, v1"); p("v_lshrrev_b32 v6, 2, v1")
    p("v_lshlrev_b32 v7, 10, v5"); p("v_lshl_add_u32 v7, v6, 4, v7")
    p(f"s_lshl_b32 s{t0}, s{sQB}, 8"); p(f"s_lshl_b32 s{t1}, s{sH}, 3"); p(f"s_add_u32 s{t0}, s{t0}, s{t1}")
    p(f"s_lshl_b32 s{t1}, s{sW}, 1"); p(f"s_add_u32 s{t0}, s{t0}, s{t1}")
    p(f"s_lshl_b32 s{t1}, s{t0}, 10")
    p("v_lshrrev_b32 v39, 2, v6"); p("v_lshlrev_b32 v39, 17, v39"); p("v_and_b32 v6, 3, v6")
    p("v_lshl_add_u32 v39, v6, 6, v39"); p("v_lshl_add_u32 v39, v5, 4, v39")
    p("s_waitcnt lgkmcnt(0)")
    mksrd(p, RX, 4, 2048*512*2)
    for m in range(4): p(f"buffer_load_dwordx4 {vr(X0+4*m,4)}, v7, {R(RX)}, s{t1} offen offset:{m*256}")
    mksrd(p, RWS, 30, WS_SIZE)
    eload(p)
    p(f"s_lshr_b32 s{t2}, s{t0}, 4"); p(f"s_lshl_b32 s{t2}, s{t2}, 10"); p(f"s_and_b32 s{t0}, s{t0}, 15"); p(f"s_lshl_b32 s{t0}, s{t0}, 6")
    p(f"s_add_u32 s3, s{t2}, s{t0}"); p(f"s_add_u32 s3, s3, {WS_XF}")
    late_setup(p); addr_regs(p)
    p("; MARKL")
    p("s_waitcnt vmcnt(1)")
    p("; MARKM")
    for m in range(4): unpack8(p, X0+4*m, XF32+8*m)
    p(f"v_add_f32 v{X0}, v{XF32}, v{XF32+1}"); p(f"v_mul_f32 v{X0+1}, v{XF32}, v{XF32}")
    p(f"v_add_f32 v{X0+2}, v{XF32+2}, v{XF32+3}"); p(f"v_mul_f32 v{X0+3}, v{XF32+1}, v{XF32+1}")
    for e in range(4, 32): p(f"v_add_f32 v{X0+2*(e%2)}, v{X0+2*(e%2)}, v{XF32+e}")
    for e in range(2, 32): p(f"v_fmac_f32 v{X0+1+2*(e%2)}, v{XF32+e}, v{XF32+e}")
    p(f"v_add_f32 v{X0}, v{X0}, v{X0+2}"); p(f"v_add_f32 v{X0+1}, v{X0+1}, v{X0+3}")
    red_ror(p, [X0, X0+1], [X0+2, X0+3], ['row_ror:4', 'row_ror:8'])
    p(f"v_mul_f32 v{X0}, {f32(1/512)}, v{X0}"); p(f"v_mul_f32 v{X0+1}, {f32(1/512)}, v{X0+1}")
    p(f"v_fma_f32 v{X0+1}, -v{X0}, v{X0}, v{X0+1}"); p(f"v_max_f32 v{X0+1}, 0, v{X0+1}")
    rnd_bf16(p, X0); rnd_bf16(p, X0+1)
    p(f"v_add_f32 v{X0+1}, {f32(EPS)}, v{X0+1}"); rnd_bf16(p, X0+1)
    p(f"v_sqrt_f32 v{X0+1}, v{X0+1}"); p("s_nop 0"); rnd_bf16(p, X0+1)
    p(f"v_rcp_f32 v{X0+1}, v{X0+1}"); p("s_nop 0")
    p(f"v_mul_f32 v{X0}, -v{X0}, v{X0+1}") if False else p(f"v_mul_f32_e64 v{X0}, -v{X0}, v{X0+1}")
    for m in range(4):
        for e in range(8): p(f"v_fma_f32 v{XF32+8*m+e}, v{XF32+8*m+e}, v{X0+1}, v{X0}")
        for e in range(4): p(f"v_cvt_pk_f16_f32 v{88+4*m+e}, v{XF32+8*m+2*e}, v{XF32+8*m+2*e+1}")
        p(f"buffer_store_dwordx4 {vr(88+4*m,4)}, v39, {R(RWS)}, s3 offen sc1")
        if m < 3: p("s_add_u32 s3, s3, 524288")
    mktag(p, 4)
    p(f"s_lshl_b32 s{t0}, s{sQB}, 8"); p(f"s_add_u32 s{t2}, s{t0}, {WS_F0X}")
    p(f"s_lshl_b32 s{t0}, s{sH}, 3"); p(f"s_lshl_b32 s{t1}, s{sW}, 1"); p(f"s_add_u32 s{t0}, s{t0}, s{t1}")
    p(f"v_lshlrev_b32 v5, 11, v1"); p(f"v_add_u32 v5, s{t0}, v5"); p(f"v_mov_b32 v6, s{sTAG}")
    p("; MARKN")
    p("s_waitcnt vmcnt(0)")
    p("; MARKO")
    p("s_mov_b64 exec, 15")
    p(f"buffer_store_dword v6, v5, {R(RWS)}, s{t2} offen sc1")
    p("s_mov_b64 exec, -1")
    p("s_barrier")
    w0_only(p, "F_SYNC")
    p("v_lshlrev_b32 v5, 2, v1")
    p(f"s_and_b32 s3, s{sH}, 3"); p("s_lshl_b32 s3, s3, 11"); p(f"s_add_u32 s{t2}, s{t2}, s3")
    p(f"s_and_b32 s3, s2, 31"); p("s_lshl_b32 s3, s3, 8"); p(f"s_add_u32 s3, s3, {WS_F0M}")
    wait_tags(p, "F0", [f"buffer_load_dword v40, v5, {R(RWS)}, s{t2} offen sc1", f"buffer_load_dword v41, v5, {R(RWS)}, s3 offen sc1"], [40, 41])
    p("s_branch F_SYNC")
    p.label("F_MOD")
    p("v_and_b32 v5, 7, v1"); p("v_lshrrev_b32 v6, 3, v1")
    p(f"s_mov_b32 s{t0}, {16*6144}"); p(f"v_mul_lo_u32 v7, v6, s{t0}"); p("v_lshl_add_u32 v7, v5, 4, v7")
    p("v_lshlrev_b32 v39, 5, v5"); p("v_lshlrev_b32 v6, 5, v6")
    p(f"s_sub_u32 s{t0}, s2, 64"); p(f"s_and_b32 s{t1}, s{t0}, 31"); p(f"s_add_u32 s{t1}, s{t1}, 16"); p(f"s_lshr_b32 s{t0}, s{t0}, 5")
    p(f"s_and_b32 s{t2}, s2, 15"); p(f"s_lshr_b32 s{t3}, s2, 4")
    p("s_cmp_lt_u32 s2, 64"); p(f"s_cselect_b32 s{t1}, s{t2}, s{t1}"); p(f"s_cselect_b32 s{t0}, s{t3}, s{t0}")
    p("s_cmp_lt_u32 s2, 192"); p(f"s_cselect_b32 s{t3}, {512*3072*2}, 0")
    p("s_waitcnt lgkmcnt(0)")
    mksrd(p, RA, 24, 1024); mksrd(p, RB, 26, f"s{t3}")
    p(f"s_lshl_b32 s{t2}, s{t0}, 8")
    for k in range(2): p(f"buffer_load_dwordx4 {vr(40+4*k,4)}, v6, {R(RA)}, s{t2} offen offset:{16*k}")
    p(f"s_mul_i32 s{t2}, s{t0}, {128*6144}"); p(f"s_lshl_b32 s{t3}, s{t1}, 7"); p(f"s_add_u32 s{t2}, s{t2}, s{t3}")
    for i in range(16):
        p(f"buffer_load_dwordx4 {vr(104+4*i,4)}, v7, {R(RB)}, s{t2} offen")
        if i < 15: p(f"s_add_u32 s{t2}, s{t2}, 6144")
    mksrd(p, RWS, 30, WS_SIZE); mksrd(p, RX, 4, 2048*512*2)
    eload(p)
    p(f"s_mul_i32 s3, s{t0}, 12288"); p(f"s_lshl_b32 s{t1}, s{t1}, 8"); p(f"s_add_u32 s3, s3, s{t1}"); p(f"s_add_u32 s3, s3, {WS_MP}")
    late_setup(p)
    p("s_waitcnt vmcnt(17)")
    unpack8(p, 40, 56); unpack8(p, 44, 64)
    for e in range(16): p(f"v_mul_f32 v{72+e}, {f32(-LOG2E)}, v{56+e}")
    for e in range(16): p(f"v_exp_f32 v{72+e}, v{72+e}")
    for e in range(16): p(f"v_add_f32 v{72+e}, 1.0, v{72+e}")
    for e in range(16): p(f"v_rcp_f32 v{72+e}, v{72+e}")
    for e in range(16): p(f"v_mul_f32 v{56+e}, v{56+e}, v{72+e}")
    rnd_pairs(p, list(range(56, 72)))
    for i in range(16):
        p(f"s_waitcnt vmcnt({16-i})")
        unpack8(p, 104+4*i, 72)
        for e in range(8):
            p(f"v_mul_f32 v{40+e}, v{56+i}, v{72+e}" if i == 0 else f"v_fmac_f32 v{40+e}, v{56+i}, v{72+e}")
    p("; MARKP")
    red_ror(p, list(range(40, 48)), list(range(48, 56)), ['row_ror:8'])
    p("s_cmp_lt_u32 s2, 192"); p("s_cbranch_scc0 F_MOD2")
    p("s_mov_b64 exec, 0xff00")
    for k in range(4): p(f"v_mov_b32 v{40+k}, v{44+k}")
    p("v_add_u32 v39, 16, v39")
    p("s_mov_b64 exec, 0xffff")
    p(f"buffer_store_dwordx4 v[40:43], v39, {R(RWS)}, s3 offen sc1")
    p("s_mov_b64 exec, -1")
    p.label("F_MOD2")
    mktag(p, 0)
    p("v_lshlrev_b32 v5, 8, v1"); p(f"v_mov_b32 v6, s{sTAG}")
    p(f"s_lshl_b32 s{t0}, s2, 2"); p(f"s_add_u32 s{t1}, s{t0}, {WS_F0R - 256}"); p(f"s_add_u32 s{t0}, s{t0}, {WS_F0M}")
    p("s_cmp_lt_u32 s2, 64"); p(f"s_cselect_b32 s{t0}, s{t0}, s{t1}"); p(f"s_cselect_b32 s{t2}, -1, 1"); p(f"s_mov_b32 s{t3}, 0")
    p("s_waitcnt vmcnt(0)")
    p("; MARKQ")
    p(f"s_mov_b64 exec, s[{t2}:{t3}]")
    p(f"buffer_store_dword v6, v5, {R(RWS)}, s{t0} offen sc1")
    p("s_mov_b64 exec, -1")
    addr_regs(p)
    p("s_barrier")
    p("s_branch F_SYNC")
    p.label("F_WQ")
    if 'nocodepf' not in OPT:
        p(f"s_getpc_b64 s[{RPF}:{RPF+1}]")
        p.label("F_PC")
        p(f"s_sub_u32 s{RPF}, s{RPF}, F_PC-{name}"); p(f"s_subb_u32 s{RPF+1}, s{RPF+1}, 0")
        p(f"s_mov_b32 s{RPF+2}, F_CODE_END-{name}"); p(f"s_mov_b32 s{RPF+3}, 0x20000")
        p(f"s_lshr_b32 s{t1}, s2, 3"); p(f"s_mul_i32 s{t1}, s{t1}, 3072")
        for k in range(3): p(f"buffer_load_dwordx4 {vr(108+4*k,4)}, v{XV}, {R(RPF)}, s{t1} offen offset:{k*1024}")
    p("v_lshlrev_b32 v5, 2, v4"); p("v_xor_b32 v5, v3, v5"); p("v_lshlrev_b32 v5, 4, v5"); p(f"v_lshl_add_u32 v{DW}, v4, 13, v5")
    p(f"s_lshl_b32 s{t0}, s{sH}, 8")
    p("s_waitcnt lgkmcnt(0)")
    mksrd(p, RWS, 30, WS_SIZE)
    if 'tlb' in OPT:
        p("v_lshlrev_b32 v5, 19, v1")
        p(f"buffer_load_dword v104, v5, {R(RWS)}, 0 offen")
        p("v_lshlrev_b32 v5, 16, v1")
        p(f"buffer_load_dword v105, v5, {R(RWS)}, 0 offen offset:128")
    eload(p)
    mksrd(p, RWQ, 10, 512*4096*2)
    p(f"s_lshl_b32 s{t1}, s{sQB}, 19"); p(f"s_add_u32 s{t1}, s{t1}, s{t0}")
    for i in range(16 if 'nopre' not in OPT else 0):
        p(f"buffer_load_dwordx4 {vr(40+4*i,4)}, v{DW}, {R(RWQ)}, s{t1} offen")
        if i < 15: p(f"s_add_u32 s{t1}, s{t1}, 32768")
    p(f"s_mov_b32 s3, s{t0}")
    mksrd(p, RX, 4, 2048*512*2)
    late_setup(p)
    if 'tlb' in OPT:
        p("v_lshlrev_b32 v5, 13, v1")
        p(f"buffer_load_dword v106, v5, {R(RK)}, 0 offen"); p(f"buffer_load_dword v107, v5, {R(RV)}, 0 offen")
        p("v_lshlrev_b32 v5, 15, v1")
        p(f"buffer_load_dword v108, v5, {R(RWO)}, 0 offen")
        mksrd(p, RA, 28, 2048*512*2)
        p(f"buffer_load_dword v109, v5, {R(RA)}, 0 offen")
    if 'nopre' not in OPT: addr_regs(p); mktag(p, 0)
    p("; MARKT")
    for c in range(8):
        for i in range(16):
            p(f"s_mov_b32 m0, {WQ_REGION[c] + i*1024}")
            if c + i: p(f"s_add_u32 s3, s3, 32768")
            else: p("s_nop 0")
            p(f"buffer_load_dwordx4 v{DW}, {R(RWQ)}, s3 offen lds")
            if i % 4 == 3 and WQTH: p(f"s_waitcnt vmcnt({WQTH})")
    p("; MARKR")
    if 'nopre' in OPT: addr_regs(p); mktag(p, 0)
    p("s_waitcnt vmcnt(0)"); p("s_barrier")
    p.label("F_SYNC")
    p(Call(lambda st: (st['vq'].clear(), st['lq'].clear())))
    p("s_barrier")
    p("; MARKA")
    p(f"s_getpc_b64 s[{RWQ}:{RWQ+1}]")
    p.label("F_PC2")
    p(f"s_sub_u32 s{RWQ}, s{RWQ}, F_PC2-{name}"); p(f"s_subb_u32 s{RWQ+1}, s{RWQ+1}, 0")
    p(f"s_mov_b32 s{RWQ+2}, F_SLOW-{name}"); p(f"s_mov_b32 s{RWQ+3}, 0x20000")
    p(f"s_lshr_b32 s3, s2, 3"); p(f"s_lshl_b32 s3, s3, 2"); p(f"s_add_u32 s3, s3, s{sW}"); p("s_lshl_b32 s3, s3, 10")
    p(f"v_lshrrev_b32 v5, 2, v3"); p("v_and_b32 v6, 3, v3"); p(f"v_lshlrev_b32 v{XX}, 8, v5")
    p(f"v_lshl_add_u32 v{XX}, v4, 6, v{XX}"); p(f"v_lshl_add_u32 v{XX}, v6, 4, v{XX}")
    p("v_lshlrev_b32 v5, 3, v0")
    p(f"s_mov_b32 s{t0}, {WS_MP}")
    for kq in range(4):
        p(f"buffer_load_dwordx2 {vr(200+2*kq,2)}, v5, {R(RWS)}, s{t0} offen sc1", v='MP')
        p(f"buffer_load_dwordx2 {vr(208+2*kq,2)}, v5, {R(RWS)}, s{t0} offen offset:2048 sc1", v='MP')
        if kq < 3: p(f"s_add_u32 s{t0}, s{t0}, 12288")
    p(f"v_lshlrev_b32 v{FRV}, 3, v1"); p(f"s_mov_b32 s{t2}, {WS_F0R}")
    p(f"buffer_load_dwordx2 v[{MX}:{MX+1}], v{FRV}, {R(RWS)}, s{t2} offen sc1", v='FR')
    def x_load(ks, g):
        r = XR + (ks % 8)*16 + g*4
        return I(f"buffer_load_dwordx4 {vr(r,4)}, v{XX}, {R(RWS)}, s{sXO} offen offset:{g*1024} sc1", v=('X', ks))
    x_bump = f"s_add_u32 s{sXO}, s{sXO}, 131072"
    for ks in range(XLA):
        for g in range(4): p(x_load(ks, g))
        p(x_bump)
    p("v_lshrrev_b32 v5, 2, v0"); p("v_lshlrev_b32 v5, 6, v5"); p("v_and_b32 v6, 3, v0"); p("v_lshl_add_u32 v5, v6, 3, v5")
    p(f"v_add_u32 v5, {LDS_MQ}, v5")
    p(WV({'MP'}))
    for b in (200, 208):
        for e in range(2):
            p(f"v_add_f32 v{b+e}, v{b+e}, v{b+2+e}"); p(f"v_add_f32 v{b+4+e}, v{b+4+e}, v{b+6+e}")
        for e in range(2): p(f"v_add_f32 v{b+e}, v{b+e}, v{b+4+e}")
    rnd_pairs(p, [200, 201, 208, 209])
    for e in range(2): p(f"v_add_f32 v{208+e}, 1.0, v{208+e}")
    rnd_pairs(p, [208, 209])
    for r in (200, 201, 208, 209): p(f"v_mul_f32 v{r}, {f32(CS)}, v{r}")
    p("ds_write_b64 v5, v[208:209]"); p("ds_write_b64 v5, v[200:201] offset:32")
    p("s_waitcnt lgkmcnt(0)")
    p("s_barrier")
    def wfrag_reads(fs, j, ks):
        c, kh = ks // 2, ks % 2
        s_, par = j // 2, j % 2
        reg = WQ_REGION[c]
        av = (WA if reg < 65536 else WAH) + s_
        o = (reg % 65536) + kh*8192 + par*8
        f = FSET[fs] + 4*j
        return [I(f"ds_read_b64_tr_b16 a[{f}:{f+1}], v{av} offset:{o}", l=('F', ks, j)),
                I(f"ds_read_b64_tr_b16 a[{f+2}:{f+3}], v{av} offset:{o+1024}", l=('F', ks, j))]
    def mq_reads(ks):
        b = MQ[ks % 2]
        return [I(f"ds_read_b128 {vr(b+4*i,4)}, v{MA} offset:{ks*256 + i*16}", l=('MQ', ks)) for i in range(4)]
    def mod_stream(ks):
        st = []
        b = MQ[ks % 2]
        for g in range(4):
            for r in range(4):
                x = XR + (ks % 8)*16 + g*4 + r
                tt = TMP + ((g*4 + r) % 4)*2
                st.append((f"v_fma_mix_f32 v{tt}, v{x}, v{b+2*r}, v{b+8+2*r} op_sel_hi:[1,0,0]", 4))
                st.append((f"v_fma_mix_f32 v{tt+1}, v{x}, v{b+2*r+1}, v{b+8+2*r+1} op_sel:[1,0,0] op_sel_hi:[1,0,0]", 4))
                st.append((f"v_cvt_pk_bf16_f32 v{HB[ks%2]+g*4+r}, v{tt}, v{tt+1}", 4))
        return st
    p(mq_reads(0)); p(mq_reads(1))
    for j in range(8): p(wfrag_reads(0, j, 0))
    p(WV({('X', 0)}))
    p(WL({('MQ', 0)}))
    for t, _ in mod_stream(0): p(t)
    p("; MARKD")
    kv_after = {3: [('K', 0), ('K', 1)], 5: [('K', 2), ('K', 3)], 7: [('V', 0), ('V', 1)], 9: [('K', 4), ('K', 5)],
                11: [('V', 2), ('V', 3)], 13: [('K', 6)]}
    for ks in range(16):
        fs = ks % 2
        mf = []
        for j in range(8):
            f = FSET[fs] + 4*j
            for g in range(4):
                o = (j*4 + g)*4
                mf.append((f"{MFMA} {ar(o,4)}, a[{f}:{f+3}], {vr(HB[ks%2]+g*4,4)}, {'0' if ks == 0 else ar(o,4)}", (j, g)))
        pre = []
        if ks < 15: pre += [WV({('X', ks+1)}), WL({('MQ', ks+1)})]
        if ks in kv_after: pre.append("s_barrier")
        pf = (lambda j, ks=ks: wfrag_reads(1 - ks % 2, j, ks+1)) if ks < 15 else None
        dm = sum([dma_unit(k, u) for (k, u) in kv_after.get(ks, [])], [])
        pw, mfl, gaps, pos = block([(mf, ('F', ks), pf)], dmas=dm)
        extra = []
        if ks + 2 < 16: extra += [('L', r) for r in mq_reads(ks+2)]
        if ks + XLA < 16: extra += [('V', x_load(ks+XLA, g)) for g in range(4)]
        cand = [pos[(0, j, 3)] for j in range(8)] + [pos[(0, j, 1)] for j in range(8)] + [pos[(0, j, 2)] for j in range(8)]
        cand = [i for i in cand if gaps[i].used == 0 and not gaps[i].salu]
        assert len(extra) <= len(cand)
        for (kind, op), i in zip(extra, cand):
            gaps[i].mem.append(op); gaps[i].used += 4 if kind == 'L' else 8
        if ks < 15: fill(gaps, mod_stream(ks+1))
        if ks + XLA < 16: gaps[-1].valu.append(x_bump)
        p(pre); p(pw)
        if ks in (4, 8, 12): p("; MARK" + {4: 'a', 8: 'b', 12: 'c'}[ks])
        emit_stream(p, mfl, gaps)
    p("; MARKd")
    p(WV({('K', 0), ('K', 1), ('K', 2), ('K', 3), ('V', 0)}))
    p("s_barrier")
    p("; MARKB")
    for j in range(8): p(kfrag_reads(0, j, 0))
    dma_plain(p, dma_unit('V', 4))
    p(f"v_cmp_ne_u32 vcc, s{sTAG}, v{MX}"); p(f"s_mov_b64 s[{t0}:{t1}], vcc"); p(f"v_cmp_ne_u32 vcc, s{sTAG}, v{MX+1}")
    p(f"s_or_b64 vcc, vcc, s[{t0}:{t1}]")
    p("s_cbranch_vccz F0R_done")
    p(Call(lambda st: saved.__setitem__('vq', list(st['vq']))))
    wait_tags(p, "F0R", [f"buffer_load_dwordx2 v[{MX}:{MX+1}], v{FRV}, {R(RWS)}, s{t2} offen sc1"], [MX, MX+1])
    p.label("F0R_done")
    p(Call(lambda st: st['vq'].__setitem__(slice(None), saved['vq'])))
    def qfin(g):
        ops = []
        for s_ in range(4):
            tb = TMP if s_ % 2 == 0 else NEG
            for h in range(2):
                o = ((2*s_ + h)*4 + g)*4
                ops += [f"v_accvgpr_read_b32 v{tb + (h*4 + r)}, a{o+r}" for r in range(4)]
            ops += [f"v_cvt_pk_bf16_f32 v{Q+(g*4+s_)*4+k}, v{tb+2*k}, v{tb+2*k+1}" for k in range(4)]
        return ops
    for x in qfin(0): p(x)
    p(WL({('K', 0, j) for j in range(8)}))
    for g in range(4):
        ops = qfin(g+1) if g < 3 else []
        for kt in range(2):
            for st in range(4):
                f = FSET[0] + 4*(kt*4 + st); d = S[0] + g*8 + kt*4; q = Q + (g*4 + st)*4
                p(f"{MFMA} {vr(d,4)}, a[{f}:{f+3}], {vr(q,4)}, {'0' if st == 0 else vr(d,4)}")
                if g == 3: p(kfrag_reads(1, kt*4 + st, 1))
                for _ in range(6):
                    if ops: p(ops.pop(0))
    p.nop(8)
    tile_max(p)
    for g in range(4):
        for r in range(4): p(f"v_sub_f32 v{NEG+g*4+r}, 0, v{TMP+g}")
        for r in range(8): p(f"v_sub_f32 v{S[0]+g*8+r}, v{S[0]+g*8+r}, v{TMP+g}")
    p.nop(2)

    def period(u, tail=(), vm=12):
        if u == 0:
            halves = [(qk_half(1, 1), ('K', 1), lambda j: kfrag_reads(0, j, 2))]
        elif u <= 62:
            halves = [(qk_half(0, (u+1) % 2), ('K', u+1), lambda j: vfrag_reads(1, j, u-1)),
                      (pv_half(1, (u-1) % 2, czero=(u == 1)), ('V', u-1),
                       (lambda j: kfrag_reads(0, j, u+2)) if u <= 61 else (lambda j: vfrag_reads(0, j, 62)))]
        elif u == 63:
            halves = [(pv_half(0, 0), ('V', 62), lambda j: vfrag_reads(1, j, 63))]
        else:
            halves = [(pv_half(1, 1), ('V', 63), None)]
        if u % 2 == 0: units = [('K', x) for x in (u+7, u+8) if u <= 56]
        else: units = [('V', x) for x in (u+4, u+5) if x <= 63]
        dm = sum([dma_unit(k, x) for (k, x) in units], [])
        st = {58: 0, 60: 1, 61: 2, 62: 3, 63: 4}.get(u)
        if st is not None: dm += wo_unit(2*st) + wo_unit(2*st+1)
        tl = list(tail)
        bar = None
        if u % 2 == 1 and u <= 61:
            if vm == 'A': bar = WV({('K', 63), ('K', 64), ('V', 60)})
            elif vm == 'B': bar = WV({('V', 61), ('V', 62), ('V', 63)})
            else: bar = f"s_waitcnt vmcnt({vm})"
        pw, mfl, gaps, pos = block(halves, dmas=dm)
        pf = []
        if u == 2 and 'nocodepf' not in OPT: pf = [(f"buffer_load_dwordx4 {ar(aWG,4)}, v{XV}, {R(RWQ)}, s3 offen", None)]
        if u == 4: pf = [(f"buffer_load_dwordx4 {ar(aWG,4)}, v{XV}, {R(RPF)}, s{sPF} offen", f"s_add_u32 s{sPF}, s{sPF}, 1024")]
        if u in (0, 6): pf = [(f"buffer_load_dwordx4 {ar(aWG,4)}, v{XV}, {R(RWO)}, s{sPW} offen", f"s_add_u32 s{sPW}, s{sPW}, 1024")]
        if u in (58, 59, 60, 61): pf = [(f"buffer_load_dwordx4 {ar((aWG, aWU)[(u-58)//2]+8*(u%2)+4*i,4)}, v{PFD+2}, {R((RG, RU)[(u-58)//2])}, s{(sG0, sG1)[u%2]} offen offset:{i*3584}", None) for i in range(2)]
        hl = len(halves) - 1
        if 58 <= u <= 63 and 'nowopf' not in OPT:
            n0 = (u - 58)*2
            for n in range(n0, min(n0 + 2, 6)):
                i = pos[(hl, (2, 6)[n % 2], 1)] if u < 63 else pos[(0, (3, 7)[n % 2], 1)]
                assert gaps[i].used == 0, (u, n)
                if n == 0: gaps[0].salu.append(f"s_lshr_b32 s{sPW}, s2, 3"); gaps[1].salu.append(f"s_mul_i32 s{sPW}, s{sPW}, 24576")
                if n == 0: gaps[2].salu.append(f"s_mul_i32 s3, s{sW}, 6144"); gaps[3].salu.append(f"s_add_u32 s{sPW}, s{sPW}, s3"); gaps[4].salu.append(f"s_add_u32 s{sPW}, s{sPW}, {320*1024}")
                gaps[i].mem.append(I(f"buffer_load_dword v{PFD+3}, v{XV}, {R(RWO)}, s{sPW} offen", v=('PF', 0))); gaps[i].used += 8
                gaps[i+1].salu.append(f"s_add_u32 s{sPW}, s{sPW}, 1024")
        for (m, sa), hj in zip(pf, [(hl, 3), (hl, 7), (0, 3), (0, 7)]):
            i = pos[hj + (1,)]
            assert gaps[i].used == 0
            gaps[i].mem.append(I(m, v=('PF', 0))); gaps[i].used += 8
            if sa: gaps[i+1].salu.append(sa)
        if u <= 63: fill(gaps, sm_stream(u % 2, u % 2, first=(u == 0)), window=(4 if NT_ == 8 else 8), tight=(NT_ != 8))
        nxt = ('K', u+2) if u + 1 <= 62 else (('V', 62) if u + 1 == 63 else None)
        if nxt: gaps[-3].salu.append(WL({nxt + (j,) for j in range(4)}))
        if bar:
            gaps[-2].salu.append(bar); gaps[-1].salu.append("s_barrier")
        if tl:
            gaps[-5].salu.append(tl[0]); gaps[-4].salu.append(tl[1]); gaps[-1].valu.append(tl[2])
        p(pw); emit_stream(p, mfl, gaps)

    p("; MARKe")
    period(0)
    p(f"s_mov_b32 s{sCNT}, 0")
    period(1)
    p(Call(lambda st: saved.__setitem__('e', list(st['lq']))))
    p("; MARKf")
    p(".p2align 6")
    p.label("F_LOOP")
    for u in range(2, 10):
        if u == 9: period(u, tail=[f"s_add_u32 s{sCNT}, s{sCNT}, 1", f"s_cmp_lt_u32 s{sCNT}, 7", "s_cbranch_scc1 F_LOOP"])
        else: period(u)
    def loop_exit(st):
        ex = [(k, un - 8, j) for (k, un, j) in st['lq']]
        assert ex == saved['e'], (ex, saved['e'])
        st['lq'][:] = [(k, un + 48, j) for (k, un, j) in st['lq']]
        st['vq'][:] = [(k, un + 48) for (k, un) in st['vq']]
        assert ('K', 64) in st['vq'], st['vq']
    p(Call(loop_exit))
    p("; MARKg")
    period(58); period(59, vm='A'); period(60); period(61, vm='B'); period(62); period(63)
    p(f"s_lshl_b32 s{t2}, s{sSLOT}, 7"); p(f"s_add_u32 s{sPF}, s{t2}, {WS_FO}")
    p(f"v_and_b32 v{FRV}, 7, v1"); p(f"v_lshlrev_b32 v{FRV}, 2, v{FRV}")
    p(f"buffer_load_dword v{MX}, v{FRV}, {R(RWS)}, s{sPF} offen sc1", v=('FOC', 0))
    pvm = pv_half(1, 1)
    ms = [t for t, jg in pvm if jg is None]; pvs = [t for t, jg in pvm if jg is not None]
    def epi_ops(s_, g, k):
        t = S[0] + (k % 4)*12
        ops = []
        for h in range(2):
            o = ((2*s_ + h)*4 + g)*4
            ops += [f"v_accvgpr_read_b32 v{t + h*4 + r}, a{o+r}" for r in range(4)]
        ops += [f"v_mul_f32 v{t+r}, v{t+r}, v{NEG+g}" for r in range(8)]
        ops += [f"v_cvt_pk_bf16_f32 v{t+8+r}, v{t+2*r}, v{t+2*r+1}" for r in range(4)]
        ops.append(f"buffer_store_dwordx4 {vr(t+8,4)}, v{XV}, {R(RWS)}, s{sOF} offen offset:{g*1024} sc1")
        if g == 3 and s_ < 3: ops.append(f"s_add_u32 s{sOF}, s{sOF}, 131072")
        return ops
    for t in ms: p(t)
    for g in VSUM: p(f"v_add_f32 v{LS+g*4}, v{LS+g*4}, v{LS+g*4+1}")
    if VSUM: allreduce(p, [LS+g*4 for g in VSUM], [LS+g*4+1 for g in VSUM], steps=(16, 32))
    p(WL({('V', 63, j) for j in range(4)}))
    chk = [f"v_mov_b32 v{TMP}, {f32(2.0**40 if 'slow' not in OPT else -1.0)}", f"s_mov_b64 s[{t0}:{t1}], 0"]
    for g in range(4): chk += [f"v_rcp_f32 v{NEG+g}, v{LS+g*4}", f"v_cmp_nle_f32 vcc, v{LS+g*4}, v{TMP}", f"s_or_b64 s[{t0}:{t1}], s[{t0}:{t1}], vcc"]
    stream = sum([epi_ops(s_, g, s_*4+g) for s_ in range(4) for g in range(4)], [])
    si = 0
    for i, t in enumerate(pvs):
        if i == 16: p(WL({('V', 63, j) for j in range(4, 8)}))
        p(t)
        if i == 7:
            for x in chk: p(x)
        if i >= 15:
            lim = 85 if i < 23 else 170
            for _ in range(4):
                if si < lim: p(stream[si]); si += 1
    while si < 170: p(stream[si]); si += 1
    p("; MARKC")
    for x in stream[si:]: p(x)
    p.label("F_PUB")
    p(f"s_cmp_lg_u64 s[{t0}:{t1}], 0"); p(f"s_cselect_b32 s{t2}, 1, 0")
    p(WV({('FOC', 0)}))
    p(f"v_cmp_ne_u32 vcc, s{sTAG}, v{MX}")
    p("s_cmp_lg_u64 vcc, 0"); p(f"s_cselect_b32 s{t3}, 2, 0"); p(f"s_or_b32 s{t2}, s{t2}, s{t3}")
    p(f"v_mov_b32 v{TMP+1}, s{t2}")
    p(f"v_lshlrev_b32 v{TMP+2}, 2, v2"); p(f"v_add_u32 v{TMP+2}, {LDS_VOTE}, v{TMP+2}")
    p(f"ds_write_b32 v{TMP+2}, v{TMP+1}")
    p(f"v_mov_b32 v{TMP+2}, {LDS_VOTE}")
    p(f"s_lshl_b32 s{t0}, s{sQB}, 12"); p(f"s_lshr_b32 s{t1}, s{sH}, 3"); p(f"s_lshl_b32 s{t1}, s{t1}, 9"); p(f"s_add_u32 s{t0}, s{t0}, s{t1}")
    p(f"s_and_b32 s{t1}, s{sH}, 7"); p(f"s_lshl_b32 s{t1}, s{t1}, 2"); p(f"s_add_u32 s{t0}, s{t0}, s{t1}"); p(f"s_add_u32 s{t0}, s{t0}, {WS_FO}")
    p("v_lshrrev_b32 v5, 2, v1"); p("v_lshlrev_b32 v5, 11, v5"); p("v_and_b32 v6, 3, v1"); p("v_lshl_add_u32 v5, v6, 7, v5")
    p(f"v_mov_b32 v6, s{sTAG}")
    tail_setup(p)
    p("s_waitcnt vmcnt(0) lgkmcnt(0)")
    p("s_barrier")
    p(f"ds_read_b128 {vr(TMP+4,4)}, v{TMP+2}")
    p("s_waitcnt lgkmcnt(0)")
    p(f"v_or_b32 v{TMP+4}, v{TMP+4}, v{TMP+5}")
    p(f"v_or3_b32 v{TMP+4}, v{TMP+4}, v{TMP+6}, v{TMP+7}")
    p("s_nop 0")
    p(f"v_readfirstlane_b32 s{t2}, v{TMP+4}")
    p(f"s_bitcmp1_b32 s{t2}, 0")
    p("s_cbranch_scc1 F_SLOW")
    w0_only(p, "FO_sig")
    p("s_mov_b64 exec, 0xff")
    p(f"buffer_store_dword v6, v5, {R(RWS)}, s{t0} offen sc1")
    p("s_mov_b64 exec, -1")
    p.label("FO_sig")
    p("; MARKF")
    p(f"s_bitcmp1_b32 s{t2}, 1")
    p("s_cbranch_scc0 FO_go")
    w0_only(p, "FO_done")
    wait_tag_pipe(p, "FOW", lambda r: f"buffer_load_dword v{r}, v{FRV}, {R(RWS)}, s{sPF} offen sc1", [MX, MX+1, MX+2, MX+3], PD, PS)
    p.label("FO_done")
    p("s_barrier")
    p.label("FO_go")
    p(Call(lambda st: (st['vq'].clear(), st['lq'].clear())))
    tail(p)
    p.label("F_END")
    p("s_endpgm")
    p.label("F_SLOW")
    AL = NEG
    for r in range(128): p(f"v_accvgpr_write_b32 a{r}, 0")
    for r in range(16): p(f"v_mov_b32 v{LS+r}, 0")
    for g in range(4): p(f"v_mov_b32 v{MX+g}, 0xff800000")
    p(f"s_mov_b32 s{sK}, 0"); p(f"s_mov_b32 s{sV}, 0"); p(f"s_mov_b32 s{sCNT}, 0")
    p.label("F_SLOOP")
    p("s_waitcnt vmcnt(0) lgkmcnt(0)")
    p("s_barrier")
    dma_plain(p, dma_unit('K', 7)); dma_plain(p, dma_unit('V', 4))
    p("s_waitcnt vmcnt(0)")
    p("s_barrier")
    for j in range(8): p(kfrag_reads(0, j, 7))
    p("s_waitcnt lgkmcnt(0)")
    for j in range(8):
        p(vfrag_reads(1, j, 4))
        if j == 5: p("s_waitcnt lgkmcnt(0)")
    for t, _ in qk_half(0, 0, czero=True): p(t)
    p.nop(8)
    tile_max(p, extra=MX)
    for g in range(4):
        p(f"v_sub_f32 v{AL+g}, v{MX+g}, v{TMP+g}")
        p(f"v_mov_b32 v{MX+g}, v{TMP+g}")
    for g in range(4): p(f"v_exp_f32 v{AL+g}, v{AL+g}")
    for i in range(32): p(f"v_sub_f32 v{S[0]+i}, v{S[0]+i}, v{MX+i//8}")
    for i in range(32): p(f"v_exp_f32 v{S[0]+i}, v{S[0]+i}")
    p("s_nop 0")
    for i in range(16): p(f"v_cvt_pk_bf16_f32 v{P[0]+i}, v{S[0]+2*i}, v{S[0]+2*i+1}")
    for g in range(4):
        for r in range(4): p(f"v_mul_f32 v{LS+g*4+r}, v{LS+g*4+r}, v{AL+g}")
    for j in range(8):
        for g in range(4):
            o = (j*4 + g)*4
            for r in range(4): p(f"v_accvgpr_read_b32 v{TMP+r}, a{o+r}")
            for r in range(4): p(f"v_mul_f32 v{TMP+r}, v{TMP+r}, v{AL+g}")
            for r in range(4): p(f"v_accvgpr_write_b32 a{o+r}, v{TMP+r}")
    p("s_waitcnt lgkmcnt(0)")
    p.nop(2)
    for t, _ in pv_half(1, 0, allsum=True): p(t)
    p.nop(8)
    p(f"s_add_u32 s{sCNT}, s{sCNT}, 1"); p(f"s_cmp_lt_u32 s{sCNT}, 64"); p("s_cbranch_scc1 F_SLOOP")
    for g in range(4): p(f"v_rcp_f32 v{NEG+g}, v{LS+g*4}")
    p(f"s_sub_u32 s{sOF}, s{sOF}, {3*131072}")
    for x in stream: p(x)
    p(f"s_mov_b64 s[{t0}:{t1}], 0")
    p(f"v_mov_b32 v{MX}, s{sTAG}"); p(f"v_not_b32 v{MX}, v{MX}")
    p("s_barrier")
    p("s_branch F_PUB")
    p.label("F_CODE_END")
    p.resolve(a)
    return kernel_desc(name, 512, 92, 256)

from ftail import tail, tail_setup
```

```python
import sys, os
sys.path.insert(0, os.path.dirname(os.path.abspath(__file__)))
from asmlib import *
from common import *
import k0, k2, k3, k456, kt

WS_STAMP = 0x2000000
TMP_ = [32, 34, 36, 38, 56, 58, 40, 42, 80, 28, 30, 0]
def add_stamps(text, names):
    out = []; cur = None; idx = -1
    for line in text.split('\n'):
        st = line.strip()
        if st.endswith(':') and st[:-1] in names:
            if cur is not None: out += stamp_tail(cur, idx)
            cur = st[:-1]; idx = names.index(cur)
            out.append(line); out.append('    s_memrealtime s[96:97]'); out.append('    s_mov_b32 s95, s2'); out.append('    s_mov_b32 s94, 0'); out.append('    s_mov_b32 s93, 0'); out.append('    s_load_dwordx2 s[98:99], s[0:1], 112'); continue
        for x in sys.argv:
            if x.startswith('marks='):
                st = st.replace('MARK' + x[6], 'MARK1').replace('MARK' + x[7], 'MARK2')
        if st in ('; MARK1', '; MARK2'):
            out += ['    s_memtime s[100:101]' if 'cyc' in sys.argv else '    s_memrealtime s[100:101]', '    s_waitcnt lgkmcnt(0)', f"    s_mov_b32 s{94 if st.endswith('1') else 93}, s100"]; continue
        if st.startswith('; TM') and 'tm' in sys.argv:
            if st == '; TMZ':
                out += [f'    s_mov_b64 s[{r}:{r+1}], 0' for r in TMP_]
            else:
                r = TMP_[int(st[4:])]; out.append(f'    s_memrealtime s[{r}:{r+1}]')
            continue
        if st == 's_endpgm' and cur is not None:
            out.append(f'    s_branch STAMP_{cur}'); continue
        if st.startswith('.globl') and cur is not None:
            out += stamp_tail(cur, idx); cur = None
        out.append(line)
    if cur is not None: out += stamp_tail(cur, idx)
    return '\n'.join(out) + '\n'
def stamp_tail(cur, idx):
    t = f'''STAMP_{cur}:
    s_waitcnt vmcnt(0) lgkmcnt(0)
    s_memrealtime s[100:101]
    s_mov_b64 exec, 1
    s_add_u32 s88, s98, {WS_STAMP + idx*0x10000}
    s_addc_u32 s89, s99, 0
    s_mov_b32 s90, 0x10000
    s_mov_b32 s91, 0x20000
    v_lshrrev_b32 v1, 6, v0
    v_lshlrev_b32 v1, 4, v1
    s_lshl_b32 s95, s95, 7
    s_waitcnt lgkmcnt(0)
    v_mov_b32 v4, s96
    v_mov_b32 v5, s100
    v_mov_b32 v6, s94
    v_mov_b32 v7, s93
    buffer_store_dwordx4 v[4:7], v1, s[88:91], s95 offen
''' + (''.join(f'''    v_mov_b32 v4, s{TMP_[4*q]}
    v_mov_b32 v5, s{TMP_[4*q+1]}
    v_mov_b32 v6, s{TMP_[4*q+2]}
    v_mov_b32 v7, s{TMP_[4*q+3]}
    s_add_u32 s88, s88, 0x10000
    s_addc_u32 s89, s89, 0
    s_nop 2
    buffer_store_dwordx4 v[4:7], v1, s[88:91], s95 offen
    s_nop 2
''' for q in range(3)) if 'tm' in sys.argv else '') + '''    s_endpgm'''
    return t.split('\n')

def build(force_slow=False, stamps=False):
    ref = open('cdna_kernels/' + NAME + '.s.ref').read().split('\n')
    head = [l for l in ref if l.startswith(';') and '@launch' not in l and 'Override launch' not in l and 'grid=ceil' not in l]
    launches = [('k0_kernel', k0.K0_GRID, 512, k0.K0_LDS), ('k2_kernel', 256, 256, k2.K2_LDS), ('kt_kernel', 256, 256, kt.KT_LDS)]
    allk = list(launches)
    for x in sys.argv:
        if x.startswith('list='):
            launches = [[l for l in allk if l[0].startswith(k)][0] for k in x[5:].split(',')]
    for n, g, b, l in launches:
        head.append(f"; @launch kernel={n} grid=({g},1,1) block=({b},1,1) lds={l}")
    a = Asm()
    a('.amdgcn_target "amdgcn-amd-amdhsa--gfx950"')
    a('.text')
    d = [k0.k0(a), k2.k2(a, force_slow=force_slow), kt.kt(a)]
    body = a.text(); desc = ''.join(d)
    if stamps:
        import re
        body = add_stamps(body, [l[0] for l in allk])
        desc = re.sub(r'next_free_sgpr \d+', 'next_free_sgpr 102', desc)
    return '\n'.join(head) + '\n' + body + '.section .rodata,"a"\n' + desc

if __name__ == '__main__':
    out = sys.argv[1] if len(sys.argv) > 1 else 'cdna_kernels/' + NAME + '.s'
    open(out, 'w').write(build(force_slow='slow' in sys.argv[2:], stamps='stamps' in sys.argv[2:]))
    print('wrote', out, os.path.getsize(out))
```

```python
import sys, re
src, dst = sys.argv[1], sys.argv[2]
sys.path.insert(0, 'gen')
sys.argv = ['x']
from gen import add_stamps
from common import NAME
kn = NAME + '_kernel'
s = open(src).read()
head, rest = s.split('.amdgcn_target', 1)
body, desc = ('.amdgcn_target' + rest).split('.section .rodata')
head = head.replace('; @launch grid', f'; @launch kernel={kn} grid')
body = add_stamps(body, [kn]); desc = re.sub(r'next_free_sgpr \d+', 'next_free_sgpr 102', desc)
open(dst, 'w').write(head + body + '.section .rodata' + desc)
```
